```python
import torch

def _softmax(x, axis=-1):
    return torch.softmax(x, dim=axis)
def _gelu(x):
    return torch.nn.functional.gelu(x, approximate="tanh")
def _silu(x):
    return torch.nn.functional.silu(x)
def _sigmoid(x):
    return torch.sigmoid(x)
def _layernorm(x, axis=-1, eps=1e-5):
    m = x.mean(dim=axis, keepdim=True)
    v = x.var(dim=axis, keepdim=True, unbiased=False)
    return (x - m) / torch.sqrt(v + eps)
def _scatter_add(tgt, idx, src, axis=0):
    return tgt.clone().index_add_(axis, idx, src)
def _segment_sum(src, seg, n):
    out = torch.zeros((n,) + src.shape[1:], dtype=src.dtype)
    return out.index_add_(0, seg, src)
def _pad(x, pw):
    flat = tuple(v for pair in reversed(pw) for v in pair)
    return torch.nn.functional.pad(x, flat)

kernel_name = 'standalone__kv_cache_quant_int4_int2_kv_with_per_channel_or_per_token_scales__decode'

def setup_inputs():

    _w = (lambda a: (lambda t: t.to(torch.bfloat16) if t.is_floating_point() else t)(torch.as_tensor(a)))
    B = 8
    Sq = 1
    Skv = 4096
    Hq = 16
    Hkv = 8
    Dh = 256
    bits = 3
    G = 128
    if G <= 0 or G >= Skv:
        G = max(1, Skv // 2)
    Skv = (Skv // G) * G
    ngk = Skv // G
    qmax = (1 << bits) - 1
    return {
        "q": _w((lambda *s: torch.randn(*s, dtype=torch.bfloat16) * 3.2)(B, Hq, Sq, Dh)),
        "qk": _w(torch.randint(0, qmax + 1, (B, Hkv, Skv, Dh)).to(torch.int32)),
        "qv": _w(torch.randint(0, qmax + 1, (B, Hkv, Skv, Dh)).to(torch.int32)),
        "k_scales": _w(torch.abs((lambda *s: torch.randn(*s, dtype=torch.bfloat16) * 3.2)(B, Hkv, ngk, Dh)) * 0.05 + 0.02),
        "k_zeros": _w((lambda *s: torch.randn(*s, dtype=torch.bfloat16) * 3.2)(B, Hkv, ngk, Dh) + float(qmax) / 2.0),
        "v_scales": _w(torch.abs((lambda *s: torch.randn(*s, dtype=torch.bfloat16) * 0.05)(B, Hkv, Skv, 1)) * 0.05 + 0.02),
        "v_zeros": _w((lambda *s: torch.randn(*s, dtype=torch.bfloat16) * 0.05)(B, Hkv, Skv, 1) + float(qmax) / 2.0),
    }

def reference(q, qk, qv, k_scales, k_zeros, v_scales, v_zeros):
    B, Hq, Sq, Dh = q.shape
    Hkv, Skv = qk.shape[1], qk.shape[2]
    ngk = k_scales.shape[2]
    G = Skv // ngk
    ks = (lambda x, n, axis: torch.repeat_interleave(x, n, dim=axis))(k_scales, G, axis=2)
    kz = (lambda x, n, axis: torch.repeat_interleave(x, n, dim=axis))(k_zeros, G, axis=2)
    k = ((lambda x, dt: x.to(dt))(qk, q.dtype) - kz) * ks
    v = ((lambda x, dt: x.to(dt))(qv, q.dtype) - v_zeros) * v_scales
    rep = Hq // Hkv
    if rep > 1:
        k = (lambda x, n, axis: torch.repeat_interleave(x, n, dim=axis))(k, rep, axis=1)
        v = (lambda x, n, axis: torch.repeat_interleave(x, n, dim=axis))(v, rep, axis=1)
    scale = float(Dh) ** -0.5
    logits = torch.einsum("bhqd,bhkd->bhqk", q, k) * scale
    p = _softmax(logits, axis=-1)
    o = torch.einsum("bhqk,bhkd->bhqd", p, v)
    return o
```

```python
import sys, argparse

NAME = "standalone__kv_cache_quant_int4_int2_kv_with_per_channel_or_per_token_scales__decode"


def regs(spec):
    out = []
    if isinstance(spec, (list, tuple)):
        for s in spec:
            out += regs(s)
        return out
    if spec is None:
        return []
    if '[' in spec:
        p = spec[0]
        a, b = spec[2:-1].split(':')
        return [f"{p}{i}" for i in range(int(a), int(b) + 1)]
    return [spec]


VALU_KINDS = ('valu', 'trans', 'dot', 'dpp', 'perm', 'readlane')


class Em:
    def __init__(self):
        self.lines = []
        self.pos = 0
        self.hist = []

    def raw(self, text):
        self.lines.append(text)

    def comment(self, text):
        self.lines.append("    ; " + text)

    def label(self, name):
        self.lines.append(name + ":")

    def nop(self, n):
        while n > 0:
            k = min(n, 16)
            self.lines.append(f"    s_nop {k-1}")
            self.pos += k
            n -= k

    def fence(self, n=10):
        self.nop(n)
        self.hist = []

    def need(self, kind, wr, rd, extra):
        req = 0
        for (p, pk, pw, pr, pe) in self.hist:
            dist = self.pos - p - 1
            n = 0
            wr_hit_rd = pw & rd
            wr_hit_wr = pw & wr
            vw = {r for r in wr_hit_rd if r[0] == 'v'}
            sw = {r for r in wr_hit_rd if r[0] == 's' or r == 'vcc'}
            if pk in VALU_KINDS:
                if vw:
                    if kind == 'dpp':
                        n = max(n, 2)
                    if kind == 'perm':
                        n = max(n, 2)
                    if kind == 'readlane':
                        n = max(n, 1)
                    if kind == 'mfma':
                        n = max(n, 2)
                    if pk == 'trans' and kind in VALU_KINDS + ('mfma',) and kind != 'trans':
                        n = max(n, 1)
                if pk == 'dot':
                    if kind != 'dot':
                        if vw or {r for r in wr_hit_wr if r[0] == 'v'}:
                            n = max(n, 3)
                    else:
                        if pw & extra.get('ab', set()):
                            n = max(n, 3)
                if sw:
                    if kind in VALU_KINDS + ('mfma',):
                        n = max(n, 2)
                    if kind == 'readlane' and (pw & extra.get('lanesel', set())):
                        n = max(n, 4)
                    if kind in ('vmem', 'vstore'):
                        n = max(n, 5)
            if pk == 'mfma':
                if kind == 'mfma':
                    if pw & extra.get('ab', set()):
                        n = max(n, 8)
                    c = extra.get('c', set())
                    if (pw & c) and pw != c:
                        n = max(n, 6)
                else:
                    if wr_hit_rd or wr_hit_wr:
                        n = max(n, 8)
                    if kind in VALU_KINDS and (pe.get('c', set()) & wr):
                        n = max(n, 3)
            if pk == 'vstore':
                if pe.get('data', set()) & wr:
                    n = max(n, 2)
            if pk == 'salu' and 'm0' in pw and ('m0' in rd):
                n = max(n, 1)
            if n > dist:
                req = max(req, n - dist)
        return req

    def ins(self, text, kind, wr=None, rd=None, **extra):
        wr = set(regs(wr))
        rd = set(regs(rd))
        ex = {k: set(regs(v)) for k, v in extra.items()}
        n = self.need(kind, wr, rd, ex)
        if n:
            self.nop(n)
        self.lines.append("    " + text)
        self.hist.append((self.pos, kind, wr, rd, ex))
        self.pos += 1
        if len(self.hist) > 24:
            self.hist = self.hist[-24:]

    def valu(self, op, d, *srcs, kind='valu', mods=''):
        rd = [s.lstrip('-') for s in srcs if isinstance(s, str) and s and (s.lstrip('-')[0] in 'vs') and not s.startswith('0x')]
        self.ins(f"{op} {d}, " + ", ".join(str(s) for s in srcs) + (" " + mods if mods else ""), kind, wr=d, rd=rd)

    def salu(self, text, wr=None, rd=None):
        self.ins(text, 'salu', wr=wr, rd=rd)

    def wait(self, vm=None, lgkm=None):
        t = "s_waitcnt"
        if vm is not None:
            t += f" vmcnt({vm})"
        if lgkm is not None:
            t += f" lgkmcnt({lgkm})"
        self.ins(t, 'other')


def gen(NW=8, TPW=128, D=16, flags="nt", exact_int=True, nocompute=False):
    assert D % 8 == 0 and TPW % D == 0 and TPW in (32, 64, 128)
    TPG = NW * TPW
    NSPLIT = 4096 // TPG
    NWG = 64 * NSPLIT
    NITER = TPW // D
    WREG = 2048
    LDS = NW * WREG + NW * 16
    ML_OFF = NW * WREG
    NT = TPW // 32
    C_EXP = 0.0625 * 1.4426950408889634
    import struct
    cexp_hex = "0x%08x" % struct.unpack('<I', struct.pack('<f', C_EXP))[0]

    S_K = 24
    S_V = 28
    S_T = 32
    sBH, sSPLIT, sWAVE, sROW, sTMP, sTMP2, sLOOP, sLANE = 36, 37, 38, 39, 40, 41, 42, 43
    sZ0, sZ1, sS0, sS1, sRA, sRB = 44, 45, 46, 47, 48, 49
    sCEXP = 50
    sPRE = 51
    sWS = 52
    vTID = 0
    vOFF = 1
    vLANE = 2
    vZ = 3
    vS = 4
    vLA = 5
    vAA = 6
    vT = 8
    vKZ = 24
    vKS = 28
    vQ = 32
    vM = 36
    vL = 37
    vX = 38
    vA = 40
    vB = 44
    vACC = 60
    vRING = 76
    NV = vRING + 4 * D

    e = Em()
    R = lambda i: vRING + 4 * (i % D)

    def v(i):
        return f"v{i}"

    def vr(a, n):
        return f"v[{a}:{a+n-1}]"

    def sr(a, n):
        return f"s[{a}:{a+n-1}]"

    kname = "attn_part_kernel"
    e.raw(f".globl {kname}")
    e.raw(".p2align 8")
    e.raw(f".type {kname},@function")
    e.label(kname)
    e.salu(f"s_cmp_ge_u32 s2, {NWG}", rd='s2')
    e.ins("s_cbranch_scc1 L_part_end", 'other')
    e.salu("s_load_dwordx16 s[4:19], s[0:1], 0", wr='s[4:19]')
    e.salu("s_load_dwordx4 s[20:23], s[0:1], 64", wr='s[20:23]')
    e.valu("v_and_b32", v(vLANE), 63, v(vTID))
    e.valu("v_lshrrev_b32", v(vX), 6, v(vTID))
    e.valu("v_lshlrev_b32", v(vOFF), 4, v(vLANE))
    e.ins(f"v_readfirstlane_b32 s{sWAVE}, v{vX}", 'readlane', wr=f"s{sWAVE}", rd=v(vX))
    import math
    lg = int(math.log2(NSPLIT))
    e.salu(f"s_lshr_b32 s{sBH}, s2, {lg}", wr=f"s{sBH}")
    e.salu(f"s_and_b32 s{sSPLIT}, s2, {NSPLIT-1}", wr=f"s{sSPLIT}")
    e.nop(4)
    e.salu(f"s_mul_i32 s{sTMP}, s{sSPLIT}, {TPG}")
    e.salu(f"s_mul_i32 s{sTMP2}, s{sWAVE}, {TPW}")
    e.salu(f"s_add_u32 s{sTMP}, s{sTMP}, s{sTMP2}")
    e.salu(f"s_lshl_b32 s{sTMP2}, s{sBH}, 12")
    e.salu(f"s_add_u32 s{sROW}, s{sTMP2}, s{sTMP}")
    e.salu(f"s_lshl_b32 s{sPRE}, s{sROW}, 10")
    e.salu(f"s_mov_b32 s{sCEXP}, {cexp_hex}")
    e.wait(lgkm=0)
    for (S, p) in ((S_K, 6), (S_V, 8)):
        e.salu(f"s_mov_b32 s{S}, s{p}")
        e.salu(f"s_and_b32 s{S+1}, s{p+1}, 0xffff")
        e.salu(f"s_mov_b32 s{S+2}, 0x10000000")
        e.salu(f"s_mov_b32 s{S+3}, 0x00020000")
    e.salu(f"s_mov_b32 s{sWS}, s22")
    e.salu(f"s_and_b32 s{sWS+1}, s23, 0xffff")
    e.salu(f"s_mov_b32 s{sWS+2}, 0x40000000")
    e.salu(f"s_mov_b32 s{sWS+3}, 0x00020000")

    fl = (" " + flags) if flags else ""

    def load_row(i, srd, off_imm):
        e.ins(f"buffer_load_dwordx4 {vr(R(i),4)}, v{vOFF}, {sr(srd,4)}, s{sPRE} offen offset:{off_imm}{fl}",
              'vmem', wr=vr(R(i), 4), rd=[v(vOFF), sr(srd, 4), f"s{sPRE}"])

    e.valu("v_lshlrev_b32", v(vX), 3, v(vLANE))
    e.valu("v_lshlrev_b32", v(vX + 1), 2, v(vLANE))

    def small_srd(p, nbytes):
        e.salu(f"s_mov_b32 s{S_T}, s{p}")
        e.salu(f"s_and_b32 s{S_T+1}, s{p+1}, 0xffff")
        e.salu(f"s_mov_b32 s{S_T+2}, {nbytes}")
        e.salu(f"s_mov_b32 s{S_T+3}, 0x00020000")

    small_srd(4, 8 * 16 * 256 * 2)
    e.salu(f"s_lshl_b32 s{sTMP2}, s{sBH}, 10")
    e.ins(f"buffer_load_dwordx2 {vr(vQ,2)}, v{vX}, {sr(S_T,4)}, s{sTMP2} offen", 'vmem', wr=vr(vQ, 2), rd=v(vX))
    e.ins(f"buffer_load_dwordx2 {vr(vQ+2,2)}, v{vX}, {sr(S_T,4)}, s{sTMP2} offen offset:512", 'vmem', wr=vr(vQ + 2, 2), rd=v(vX))
    e.salu(f"s_lshr_b32 s{sTMP2}, s{sROW}, 7")
    e.salu(f"s_lshl_b32 s{sTMP2}, s{sTMP2}, 9")
    small_srd(10, 8 * 8 * 32 * 256 * 2)
    e.ins(f"buffer_load_dwordx2 {vr(vKS+2,2)}, v{vX}, {sr(S_T,4)}, s{sTMP2} offen", 'vmem', wr=vr(vKS + 2, 2), rd=v(vX))
    small_srd(12, 8 * 8 * 32 * 256 * 2)
    e.ins(f"buffer_load_dwordx2 {vr(vKZ+2,2)}, v{vX}, {sr(S_T,4)}, s{sTMP2} offen", 'vmem', wr=vr(vKZ + 2, 2), rd=v(vX))
    e.salu(f"s_lshl_b32 s{sTMP2}, s{sROW}, 1")
    small_srd(14, 8 * 8 * 4096 * 2)
    e.ins(f"buffer_load_dword v{vS}, v{vX+1}, {sr(S_T,4)}, s{sTMP2} offen", 'vmem', wr=v(vS), rd=v(vX + 1))
    small_srd(16, 8 * 8 * 4096 * 2)
    e.ins(f"buffer_load_dword v{vZ}, v{vX+1}, {sr(S_T,4)}, s{sTMP2} offen", 'vmem', wr=v(vZ), rd=v(vX + 1))

    def issue_rows(first, n, srd):
        for j in range(n):
            load_row(first + j, srd, (j % 4) * 1024)
            if j % 4 == 3:
                e.salu(f"s_add_u32 s{sPRE}, s{sPRE}, 4096", wr=f"s{sPRE}")

    issue_rows(0, D, S_K)

    e.salu(f"s_mul_i32 s{sTMP}, s{sWAVE}, {WREG}")
    e.valu("v_lshrrev_b32", v(vT), 5, v(vLANE))
    e.valu("v_mul_u32_u24", v(vLA), TPW * 4, v(vT))
    e.valu("v_bfe_u32", v(vT), v(vLANE), 4, 1)
    e.valu("v_lshl_add_u32", v(vLA), v(vT), 2, v(vLA))
    e.valu("v_bfe_u32", v(vT), v(vLANE), 3, 1)
    e.valu("v_lshl_add_u32", v(vLA), v(vT), 3, v(vLA))
    e.valu("v_bfe_u32", v(vT), v(vLANE), 2, 1)
    e.valu("v_lshl_add_u32", v(vLA), v(vT), 4, v(vLA))
    e.valu("v_add_u32", v(vLA), f"s{sTMP}", v(vLA))
    P_OFF = 1024
    Z_OFF = 1536
    e.valu("v_and_b32", v(vT), 15, v(vLANE))
    e.valu("v_lshrrev_b32", v(vT + 1), 1, v(vT))
    e.valu("v_lshrrev_b32", v(vT + 2), 4, v(vLANE))
    e.ins(f"v_cmp_eq_u32 vcc, v{vT+1}, v{vT+2}", 'valu', wr='vcc', rd=[v(vT + 1), v(vT + 2)])
    e.valu("v_and_b32", v(vT + 3), 1, v(vLANE))
    e.valu("v_mul_u32_u24", v(vT + 3), TPW * 2, v(vT + 3))
    e.valu("v_add_u32", v(vT + 3), P_OFF, v(vT + 3))
    e.valu("v_mov_b32", v(vT + 4), Z_OFF)
    e.ins(f"v_cndmask_b32 v{vAA}, v{vT+4}, v{vT+3}, vcc", 'valu', wr=v(vAA), rd=[v(vT + 4), v(vT + 3), 'vcc'])
    e.valu("v_add_u32", v(vAA), f"s{sTMP}", v(vAA))
    e.valu("v_add_u32", v(vT), f"s{sTMP}", v(vX + 1))
    e.valu("v_mov_b32", v(vT + 1), 0)
    e.ins(f"ds_write_b32 v{vT}, v{vT+1} offset:{Z_OFF}", 'ds', rd=[v(vT), v(vT + 1)])
    for i in range(16):
        e.valu("v_mov_b32", v(vACC + i), 0)

    e.wait(vm=D)
    for (b) in (vKZ, vKS):
        e.valu("v_lshlrev_b32", v(b), 16, v(b + 2))
        e.valu("v_and_b32", v(b + 1), "0xffff0000", v(b + 2))
        e.valu("v_lshlrev_b32", v(b + 2), 16, v(b + 3))
        e.valu("v_and_b32", v(b + 3), "0xffff0000", v(b + 3))

    def k_row(i, j, pre):
        r = R(i)
        t = vT + 4 * (j % 2)
        kk = vT + 8 + 2 * (j % 2)
        a0, a1 = vB + 2 * j, vB + 2 * j + 1
        e.wait(vm=pre['cnt'])
        for c in range(4):
            e.valu("v_cvt_f32_i32", v(t + c), v(r + c))
        pre['fn']()
        if nocompute:
            e.valu("v_add_f32", v(a0), v(t), v(t + 1))
            e.valu("v_add_f32", v(a1), v(t + 2), v(t + 3))
            return
        if exact_int:
            for c in range(4):
                e.valu("v_cvt_pk_bf16_f32", v(t + c), 0, v(t + c))
        for c in range(4):
            e.valu("v_sub_f32", v(t + c), v(t + c), v(vKZ + c))
        for c in range(4):
            e.valu("v_cvt_pk_bf16_f32", v(t + c), 0, v(t + c))
        for c in range(4):
            e.valu("v_mul_f32", v(t + c), v(t + c), v(vKS + c))
        e.valu("v_cvt_pk_bf16_f32", v(kk), v(t), v(t + 1))
        e.valu("v_cvt_pk_bf16_f32", v(kk + 1), v(t + 2), v(t + 3))
        e.ins(f"v_dot2_f32_bf16 v{a0}, v{kk}, v{vQ}, 0", 'dot', wr=v(a0), rd=[v(kk), v(vQ)], ab=[v(kk), v(vQ)])
        e.ins(f"v_dot2_f32_bf16 v{a1}, v{kk}, v{vQ+2}, 0", 'dot', wr=v(a1), rd=[v(kk), v(vQ + 2)], ab=[v(kk), v(vQ + 2)])
        e.ins(f"v_dot2_f32_bf16 v{a0}, v{kk+1}, v{vQ+1}, v{a0}", 'dot', wr=v(a0), rd=[v(kk + 1), v(vQ + 1), v(a0)], ab=[v(kk + 1), v(vQ + 1)])
        e.ins(f"v_dot2_f32_bf16 v{a1}, v{kk+1}, v{vQ+3}, v{a1}", 'dot', wr=v(a1), rd=[v(kk + 1), v(vQ + 3), v(a1)], ab=[v(kk + 1), v(vQ + 3)])

    def perm(op, a, b):
        e.ins(f"{op} v{a}, v{b}", 'perm', wr=[v(a), v(b)], rd=[v(a), v(b)])

    def dpp(op, d, s0, s1, ctl):
        e.ins(f"{op}_dpp v{d}, v{s0}, v{s1} {ctl}", 'dpp', wr=v(d), rd=[v(s0), v(s1), v(d)])

    def k_reduce(lds_off):
        for j in range(8):
            perm("v_permlane32_swap_b32", vB + 2 * j, vB + 2 * j + 1)
        for j in range(8):
            e.valu("v_add_f32", v(vB + 2 * j), v(vB + 2 * j), v(vB + 2 * j + 1))
        for j in range(4):
            perm("v_permlane16_swap_b32", vB + 4 * j, vB + 4 * j + 2)
        for j in range(4):
            e.valu("v_add_f32", v(vB + 4 * j), v(vB + 4 * j), v(vB + 4 * j + 2))
        for j in range(2):
            X, Y = vB + 8 * j, vB + 8 * j + 4
            dpp("v_add_f32", X, X, X, "row_ror:8 row_mask:0xf bank_mask:0x3")
            dpp("v_add_f32", X, Y, Y, "row_ror:8 row_mask:0xf bank_mask:0xc")
        X, Y = vB, vB + 8
        dpp("v_add_f32", X, X, X, "row_shl:4 row_mask:0xf bank_mask:0x5")
        dpp("v_add_f32", X, Y, Y, "row_shr:4 row_mask:0xf bank_mask:0xa")
        dpp("v_add_f32", X, X, X, "quad_perm:[1,0,3,2] row_mask:0xf bank_mask:0xf")
        dpp("v_add_f32", X, X, X, "quad_perm:[2,3,0,1] row_mask:0xf bank_mask:0xf")
        e.ins(f"ds_write_b32 v{vLA}, v{X} offset:{lds_off}", 'ds', rd=[v(vLA), v(X)])

    def k_iter(srd_next):
        for i in range(D):
            def fn(i=i):
                load_row(i, srd_next, (i % 4) * 1024)
                if i % 4 == 3:
                    e.salu(f"s_add_u32 s{sPRE}, s{sPRE}, 4096", wr=f"s{sPRE}")
            k_row(i, i % 8, {'cnt': D - 1, 'fn': fn})
            if i % 8 == 7:
                k_reduce((i // 8) * 32)

    if NITER > 1:
        e.salu(f"s_mov_b32 s{sLOOP}, {NITER-1}")
        e.fence(4)
        e.label("L_kloop")
        k_iter(S_K)
        e.valu("v_add_u32", v(vLA), D * 4, v(vLA))
        e.salu(f"s_sub_u32 s{sLOOP}, s{sLOOP}, 1")
        e.salu(f"s_cmp_lg_u32 s{sLOOP}, 0")
        e.fence(4)
        e.ins("s_cbranch_scc1 L_kloop", 'other')
    e.salu(f"s_lshl_b32 s{sPRE}, s{sROW}, 10", wr=f"s{sPRE}")
    k_iter(S_V)

    e.salu(f"s_mul_i32 s{sTMP}, s{sWAVE}, {WREG}")
    e.valu("v_lshlrev_b32", v(vX), int(math.log2(NT * 4)), v(vLANE))
    e.valu("v_add_u32", v(vX), f"s{sTMP}", v(vX))
    e.wait(lgkm=0)
    rdop = {1: "ds_read_b32", 2: "ds_read_b64", 4: "ds_read_b128"}[NT]
    e.ins(f"{rdop} {vr(vT,NT) if NT>1 else v(vT)}, v{vX}", 'ds', wr=vr(vT, NT), rd=v(vX))
    e.wait(lgkm=0)
    for i in range(NT):
        e.valu("v_cvt_pk_bf16_f32", v(vT + i), 0, v(vT + i))
    e.valu("v_mov_b32", v(vM), v(vT))
    for i in range(1, NT):
        e.valu("v_max_f32", v(vM), v(vM), v(vT + i))

    def allreduce32(op, reg, tmp):
        dpp(op, reg, reg, reg, "quad_perm:[1,0,3,2] row_mask:0xf bank_mask:0xf")
        dpp(op, reg, reg, reg, "quad_perm:[2,3,0,1] row_mask:0xf bank_mask:0xf")
        dpp(op, reg, reg, reg, "row_ror:4 row_mask:0xf bank_mask:0xf")
        dpp(op, reg, reg, reg, "row_ror:8 row_mask:0xf bank_mask:0xf")
        e.valu("v_mov_b32", v(tmp), v(reg))
        perm("v_permlane16_swap_b32", reg, tmp)
        e.valu(op, v(reg), v(reg), v(tmp))

    allreduce32("v_max_f32", vM, vX + 1)
    for i in range(NT):
        e.valu("v_sub_f32", v(vT + i), v(vT + i), v(vM))
    for i in range(NT):
        e.valu("v_mul_f32", v(vT + i), f"s{sCEXP}", v(vT + i))
    for i in range(NT):
        e.valu("v_exp_f32", v(vT + i), v(vT + i), kind='trans')
    e.valu("v_mov_b32", v(vL), v(vT))
    for i in range(1, NT):
        e.valu("v_add_f32", v(vL), v(vL), v(vT + i))
    allreduce32("v_add_f32", vL, vX + 1)
    e.valu("v_lshlrev_b32", v(vX), int(math.log2(NT * 2)), v(vLANE))
    e.valu("v_add_u32", v(vX), f"s{sTMP}", v(vX))
    if NT == 1:
        e.valu("v_cvt_pk_bf16_f32", v(vT + 4), v(vT), v(vT))
        e.ins(f"ds_write_b16 v{vX}, v{vT+4} offset:{P_OFF}", 'ds', rd=[v(vX), v(vT + 4)])
    elif NT == 2:
        e.valu("v_cvt_pk_bf16_f32", v(vT + 4), v(vT), v(vT + 1))
        e.ins(f"ds_write_b32 v{vX}, v{vT+4} offset:{P_OFF}", 'ds', rd=[v(vX), v(vT + 4)])
    else:
        e.valu("v_cvt_pk_bf16_f32", v(vT + 4), v(vT), v(vT + 1))
        e.valu("v_cvt_pk_bf16_f32", v(vT + 5), v(vT + 2), v(vT + 3))
        e.ins(f"ds_write_b64 v{vX}, {vr(vT+4,2)} offset:{P_OFF}", 'ds', rd=[v(vX), vr(vT + 4, 2)])
    e.wait(lgkm=0)

    e.salu(f"s_mov_b32 s{sLANE}, 0", wr=f"s{sLANE}")

    def v_iter(last):
        for i in range(D):
            j = i % 8
            r = R(i)
            t = vT + 4 * (j % 2)
            if j == 0:
                e.ins(f"ds_read_b128 {vr(vA,4)}, v{vAA} offset:{(i//8)*16}", 'ds', wr=vr(vA, 4), rd=v(vAA))
            if j % 2 == 0:
                e.ins(f"v_readlane_b32 s{sRA}, v{vZ}, s{sLANE}", 'readlane', wr=f"s{sRA}", rd=[v(vZ), f"s{sLANE}"], lanesel=f"s{sLANE}")
                e.ins(f"v_readlane_b32 s{sRB}, v{vS}, s{sLANE}", 'readlane', wr=f"s{sRB}", rd=[v(vS), f"s{sLANE}"], lanesel=f"s{sLANE}")
                e.salu(f"s_add_u32 s{sLANE}, s{sLANE}, 1", wr=f"s{sLANE}")
                e.nop(1)
                e.salu(f"s_lshl_b32 s{sZ0}, s{sRA}, 16", wr=f"s{sZ0}")
                e.salu(f"s_and_b32 s{sZ1}, s{sRA}, 0xffff0000", wr=f"s{sZ1}")
                e.salu(f"s_lshl_b32 s{sS0}, s{sRB}, 16", wr=f"s{sS0}")
                e.salu(f"s_and_b32 s{sS1}, s{sRB}, 0xffff0000", wr=f"s{sS1}")
            sz = sZ0 if j % 2 == 0 else sZ1
            ss = sS0 if j % 2 == 0 else sS1
            e.wait(vm=(D - 1 - i) if last else (D - 1))
            for c in range(4):
                e.valu("v_cvt_f32_i32", v(t + c), v(r + c))
            if not last:
                load_row(i, S_V, (i % 4) * 1024)
                if i % 4 == 3:
                    e.salu(f"s_add_u32 s{sPRE}, s{sPRE}, 4096", wr=f"s{sPRE}")
            if nocompute:
                e.valu("v_add_f32", v(vACC), v(t), v(vACC))
                e.valu("v_add_f32", v(vACC + 1), v(t + 1), v(vACC + 1))
                e.valu("v_add_f32", v(vACC + 2), v(t + 2), v(vACC + 2))
                e.valu("v_add_f32", v(vACC + 3), v(t + 3), v(vACC + 3))
                continue
            if exact_int:
                for c in range(4):
                    e.valu("v_cvt_pk_bf16_f32", v(t + c), 0, v(t + c))
            for c in range(4):
                e.valu("v_subrev_f32", v(t + c), f"s{sz}", v(t + c))
            for c in range(4):
                e.valu("v_cvt_pk_bf16_f32", v(t + c), 0, v(t + c))
            for c in range(4):
                e.valu("v_mul_f32", v(t + c), f"s{ss}", v(t + c))
            if j % 2 == 1:
                for c in range(4):
                    e.valu("v_cvt_pk_bf16_f32", v(vB + 4 * c + j // 2), v(vT + c), v(vT + 4 + c))
            if j == 7:
                e.wait(lgkm=0)
                for c in range(4):
                    acc = vr(vACC + 4 * c, 4)
                    e.ins(f"v_mfma_f32_16x16x32_bf16 {acc}, {vr(vA,4)}, {vr(vB+4*c,4)}, {acc}", 'mfma',
                          wr=acc, rd=[vr(vA, 4), vr(vB + 4 * c, 4), acc], ab=[vr(vA, 4), vr(vB + 4 * c, 4)], c=acc)

    if NITER > 1:
        e.salu(f"s_mov_b32 s{sLOOP}, {NITER-1}")
        e.fence(4)
        e.label("L_vloop")
        v_iter(False)
        e.valu("v_add_u32", v(vAA), D * 2, v(vAA))
        e.salu(f"s_sub_u32 s{sLOOP}, s{sLOOP}, 1")
        e.salu(f"s_cmp_lg_u32 s{sLOOP}, 0")
        e.fence(4)
        e.ins("s_cbranch_scc1 L_vloop", 'other')
    v_iter(True)
    e.fence(10)

    e.valu("v_lshrrev_b32", v(vT), 4, v(vLANE))
    e.valu("v_lshlrev_b32", v(vT), 9, v(vT))
    e.valu("v_and_b32", v(vT + 1), 15, v(vLANE))
    e.valu("v_lshl_add_u32", v(vT), v(vT + 1), 4, v(vT))
    e.valu("v_add_u32", v(vT), f"s{sTMP}", v(vT))
    e.valu("v_lshrrev_b32", v(vT + 1), 5, v(vLANE))
    e.valu("v_lshlrev_b32", v(vT + 1), 3, v(vT + 1))
    e.salu(f"s_lshl_b32 s{sTMP2}, s{sWAVE}, 4")
    e.valu("v_add_u32", v(vT + 1), f"s{sTMP2}", v(vT + 1))
    e.ins(f"ds_write_b64 v{vT+1}, {vr(vM,2)} offset:{ML_OFF}", 'ds', rd=[v(vT + 1), vr(vM, 2)])
    for u in range(2):
        for h in range(2):
            q = vB + 4 * (2 * u + h)
            for c in range(4):
                e.valu("v_mov_b32", v(q + c), v(vACC + 4 * c + 2 * u + h))
    e.salu("s_mov_b32 exec_hi, 0")
    for u in range(2):
        for h in range(2):
            q = vB + 4 * (2 * u + h)
            e.ins(f"ds_write_b128 v{vT}, {vr(q,4)} offset:{h*1024+u*256}", 'ds', rd=[v(vT), vr(q, 4)])
    e.salu("s_mov_b64 exec, -1")
    e.wait(lgkm=0)
    e.ins("s_barrier", 'other')
    nthreads = NW * 64
    if nthreads > 512:
        e.salu(f"s_cmp_ge_u32 s{sWAVE}, 8")
        e.ins("s_cbranch_scc1 L_part_end", 'other')
    per = max(1, 512 // nthreads)
    for it in range(per):
        e.valu("v_add_u32", v(vX), it * nthreads, v(vTID))
        e.valu("v_lshrrev_b32", v(vT), 8, v(vX))
        e.valu("v_lshlrev_b32", v(vT + 1), 3, v(vT))
        e.valu("v_lshlrev_b32", v(vT + 2), 2, v(vX))
        mlb = vRING
        ob = vRING + 2 * NW
        for w in range(NW):
            e.ins(f"ds_read_b64 {vr(mlb+2*w,2)}, v{vT+1} offset:{ML_OFF+16*w}", 'ds', wr=vr(mlb + 2 * w, 2), rd=v(vT + 1))
        for w in range(NW):
            e.ins(f"ds_read_b32 v{ob+w}, v{vT+2} offset:{WREG*w}", 'ds', wr=v(ob + w), rd=v(vT + 2))
        e.wait(lgkm=0)
        e.valu("v_mov_b32", v(vM), v(mlb))
        for w in range(1, NW):
            e.valu("v_max_f32", v(vM), v(vM), v(mlb + 2 * w))
        for w in range(NW):
            e.valu("v_sub_f32", v(mlb + 2 * w), v(mlb + 2 * w), v(vM))
        for w in range(NW):
            e.valu("v_mul_f32", v(mlb + 2 * w), f"s{sCEXP}", v(mlb + 2 * w))
        for w in range(NW):
            e.valu("v_exp_f32", v(mlb + 2 * w), v(mlb + 2 * w), kind='trans')
        e.valu("v_mul_f32", v(vL), v(mlb), v(mlb + 1))
        e.valu("v_mul_f32", v(vT + 3), v(mlb), v(ob))
        for w in range(1, NW):
            e.valu("v_fmac_f32", v(vL), v(mlb + 2 * w), v(mlb + 2 * w + 1))
            e.valu("v_fmac_f32", v(vT + 3), v(mlb + 2 * w), v(ob + w))
        e.salu(f"s_lshl_b32 s{sTMP2}, s2, 11")
        e.ins(f"buffer_store_dword v{vT+3}, v{vT+2}, {sr(sWS,4)}, s{sTMP2} offen", 'vstore', rd=[v(vT + 3), v(vT + 2)])
        e.salu(f"s_lshl_b32 s{sTMP2}, s2, 4")
        e.salu(f"s_add_u32 s{sTMP2}, s{sTMP2}, 0x400000")
        e.valu("v_and_b32", v(vX + 1), 255, v(vX))
        e.ins(f"v_cmp_eq_u32 vcc, 0, v{vX+1}", 'valu', wr='vcc', rd=v(vX + 1))
        e.salu("s_and_saveexec_b64 s[56:57], vcc", rd='vcc')
        e.ins(f"s_cbranch_execz L_skipml{it}", 'other')
        e.ins(f"buffer_store_dwordx2 {vr(vM,2)}, v{vT+1}, {sr(sWS,4)}, s{sTMP2} offen", 'vstore', rd=[vr(vM, 2), v(vT + 1)])
        e.label(f"L_skipml{it}")
        e.salu("s_mov_b64 exec, s[56:57]")
        e.fence(3)
    e.label("L_part_end")
    e.ins("s_endpgm", 'other')

    k2 = "attn_comb_kernel"
    e.raw("")
    e.raw(f".globl {k2}")
    e.raw(".p2align 8")
    e.raw(f".type {k2},@function")
    e.label(k2)
    e.hist = []
    e.salu("s_cmp_ge_u32 s2, 64")
    e.ins("s_cbranch_scc1 L_comb_end", 'other')
    e.salu("s_load_dwordx2 s[4:5], s[0:1], 56")
    e.salu("s_load_dwordx2 s[6:7], s[0:1], 72")
    e.valu("v_lshrrev_b32", "v1", 8, "v0")
    e.valu("v_lshlrev_b32", "v1", 3, "v1")
    e.valu("v_lshlrev_b32", "v2", 2, "v0")
    e.valu("v_lshlrev_b32", "v3", 1, "v0")
    e.salu(f"s_mov_b32 s20, {cexp_hex}")
    e.wait(lgkm=0)
    e.salu("s_mov_b32 s8, s6")
    e.salu("s_and_b32 s9, s7, 0xffff")
    e.salu("s_mov_b32 s10, 0x40000000")
    e.salu("s_mov_b32 s11, 0x00020000")
    e.salu("s_mov_b32 s12, s4")
    e.salu("s_and_b32 s13, s5, 0xffff")
    e.salu(f"s_mov_b32 s14, {8*16*256*2}")
    e.salu("s_mov_b32 s15, 0x00020000")
    e.salu(f"s_mul_i32 s16, s2, {NSPLIT*2048}")
    e.salu(f"s_mul_i32 s17, s2, {NSPLIT*16}")
    e.salu("s_add_u32 s17, s17, 0x400000")
    CH = min(NSPLIT, 16)
    nch = NSPLIT // CH
    e.valu("v_mov_b32", "v4", "0xff800000")
    e.valu("v_mov_b32", "v5", 0)
    e.valu("v_mov_b32", "v6", 0)
    for ch in range(nch):
        for s in range(CH):
            e.ins(f"buffer_load_dwordx2 v[{10+2*s}:{11+2*s}], v1, s[8:11], s17 offen offset:{16*s}", 'vmem', wr=f"v[{10+2*s}:{11+2*s}]", rd='v1')
        for s in range(CH):
            e.ins(f"buffer_load_dword v{50+s}, v2, s[8:11], s16 offen offset:{(s%2)*2048}", 'vmem', wr=f"v{50+s}", rd='v2')
            if s % 2 == 1:
                e.salu("s_add_u32 s16, s16, 4096")
        if CH == 1:
            e.salu("s_add_u32 s16, s16, 2048")
        e.salu(f"s_add_u32 s17, s17, {16*CH}")
        e.wait(vm=0)
        e.valu("v_mov_b32", "v7", "v4")
        for s in range(CH):
            e.valu("v_max_f32", "v7", "v7", f"v{10+2*s}")
        e.valu("v_sub_f32", "v8", "v4", "v7")
        e.valu("v_mul_f32", "v8", "s20", "v8")
        e.valu("v_exp_f32", "v8", "v8", kind='trans')
        e.valu("v_mul_f32", "v5", "v5", "v8")
        e.valu("v_mul_f32", "v6", "v6", "v8")
        e.valu("v_mov_b32", "v4", "v7")
        for s in range(CH):
            e.valu("v_sub_f32", f"v{10+2*s}", f"v{10+2*s}", "v7")
        for s in range(CH):
            e.valu("v_mul_f32", f"v{10+2*s}", "s20", f"v{10+2*s}")
        for s in range(CH):
            e.valu("v_exp_f32", f"v{10+2*s}", f"v{10+2*s}", kind='trans')
        for s in range(CH):
            e.valu("v_fmac_f32", "v5", f"v{10+2*s}", f"v{11+2*s}")
            e.valu("v_fmac_f32", "v6", f"v{10+2*s}", f"v{50+s}")
    e.valu("v_rcp_f32", "v8", "v5", kind='trans')
    e.valu("v_mul_f32", "v6", "v6", "v8")
    e.valu("v_cvt_pk_bf16_f32", "v6", "v6", "v6")
    e.salu("s_lshl_b32 s16, s2, 10")
    e.ins("buffer_store_short v6, v3, s[12:15], s16 offen", 'vstore', rd=['v6', 'v3'])
    e.label("L_comb_end")
    e.ins("s_endpgm", 'other')

    nv_alloc = ((NV + 7) // 8) * 8
    hdr = open("cdna_kernels/" + NAME + ".s.ref").read().split("; @launch")[0]
    out = hdr
    out += f"; @launch kernel=attn_part_kernel grid=({NWG},1,1) block=({NW*64},1,1) lds={LDS}\n"
    out += f"; @launch kernel=attn_comb_kernel grid=(64,1,1) block=(512,1,1) lds=0\n"
    out += f"; params: NW={NW} TPW={TPW} D={D} flags={flags} exact_int={exact_int}\n"
    out += '.amdgcn_target "amdgcn-amd-amdhsa--gfx950"\n.text\n'
    out += "\n".join(e.lines) + "\n"
    out += '.section .rodata,"a"\n'
    for (k, nv, ns) in ((kname, nv_alloc, 64), (k2, 72, 32)):
        out += f""".p2align 6
.amdhsa_kernel {k}
  .amdhsa_next_free_vgpr {nv}
  .amdhsa_next_free_sgpr {ns}
  .amdhsa_accum_offset {nv}
  .amdhsa_group_segment_fixed_size 0
  .amdhsa_kernarg_size 80
  .amdhsa_user_sgpr_count 2
  .amdhsa_user_sgpr_kernarg_segment_ptr 1
  .amdhsa_system_sgpr_workgroup_id_x 1
  .amdhsa_float_denorm_mode_32 3
.end_amdhsa_kernel
"""
    return out


if __name__ == "__main__":
    ap = argparse.ArgumentParser()
    ap.add_argument("--nw", type=int, default=8)
    ap.add_argument("--tpw", type=int, default=128)
    ap.add_argument("--d", type=int, default=16)
    ap.add_argument("--flags", default="nt")
    ap.add_argument("--noexact", action="store_true")
    ap.add_argument("--nocompute", action="store_true")
    ap.add_argument("-o", default="cdna_kernels/" + NAME + ".s")
    a = ap.parse_args()
    s = gen(a.nw, a.tpw, a.d, a.flags, not a.noexact, a.nocompute)
    open(a.o, "w").write(s)
```

```python
import sys, argparse

NAME = "standalone__kv_cache_quant_int4_int2_kv_with_per_channel_or_per_token_scales__decode"


def regs(spec):
    out = []
    if isinstance(spec, (list, tuple)):
        for s in spec:
            out += regs(s)
        return out
    if spec is None:
        return []
    if '[' in spec:
        p = spec[0]
        a, b = spec[2:-1].split(':')
        return [f"{p}{i}" for i in range(int(a), int(b) + 1)]
    return [spec]


VALU_KINDS = ('valu', 'trans', 'dot', 'dpp', 'perm', 'readlane')


class Em:
    def __init__(self):
        self.lines = []
        self.pos = 0
        self.hist = []

    def raw(self, text):
        self.lines.append(text)

    def comment(self, text):
        self.lines.append("    ; " + text)

    def label(self, name):
        self.lines.append(name + ":")

    def nop(self, n):
        while n > 0:
            k = min(n, 16)
            self.lines.append(f"    s_nop {k-1}")
            self.pos += k
            n -= k

    def fence(self, n=10):
        self.nop(n)
        self.hist = []

    def need(self, kind, wr, rd, extra):
        req = 0
        for (p, pk, pw, pr, pe) in self.hist:
            dist = self.pos - p - 1
            n = 0
            wr_hit_rd = pw & rd
            wr_hit_wr = pw & wr
            vw = {r for r in wr_hit_rd if r[0] == 'v'}
            sw = {r for r in wr_hit_rd if r[0] == 's' or r == 'vcc'}
            if pk in VALU_KINDS:
                if vw:
                    if kind == 'dpp':
                        n = max(n, 2)
                    if kind == 'perm':
                        n = max(n, 2)
                    if kind == 'readlane':
                        n = max(n, 1)
                    if kind == 'mfma':
                        n = max(n, 2)
                    if pk == 'trans' and kind in VALU_KINDS + ('mfma',) and kind != 'trans':
                        n = max(n, 1)
                if pk == 'dot':
                    if kind != 'dot':
                        if vw or {r for r in wr_hit_wr if r[0] == 'v'}:
                            n = max(n, 3)
                    else:
                        if pw & extra.get('ab', set()):
                            n = max(n, 3)
                if sw:
                    if kind in VALU_KINDS + ('mfma',):
                        n = max(n, 2)
                    if kind == 'readlane' and (pw & extra.get('lanesel', set())):
                        n = max(n, 4)
                    if kind in ('vmem', 'vstore'):
                        n = max(n, 5)
            if pk == 'mfma':
                if kind == 'mfma':
                    if pw & extra.get('ab', set()):
                        n = max(n, 8)
                    c = extra.get('c', set())
                    if (pw & c) and pw != c:
                        n = max(n, 6)
                else:
                    if wr_hit_rd or wr_hit_wr:
                        n = max(n, 8)
                    if kind in VALU_KINDS and (pe.get('c', set()) & wr):
                        n = max(n, 3)
            if pk == 'vstore':
                if pe.get('data', set()) & wr:
                    n = max(n, 2)
            if pk == 'salu' and 'm0' in pw and ('m0' in rd):
                n = max(n, 1)
            if n > dist:
                req = max(req, n - dist)
        return req

    def ins(self, text, kind, wr=None, rd=None, **extra):
        wr = set(regs(wr))
        rd = set(regs(rd))
        ex = {k: set(regs(v)) for k, v in extra.items()}
        n = self.need(kind, wr, rd, ex)
        if n:
            self.nop(n)
        self.lines.append("    " + text)
        self.hist.append((self.pos, kind, wr, rd, ex))
        self.pos += 1
        if len(self.hist) > 24:
            self.hist = self.hist[-24:]

    def valu(self, op, d, *srcs, kind='valu', mods=''):
        rd = [s.lstrip('-') for s in srcs if isinstance(s, str) and s and (s.lstrip('-')[0] in 'vs') and not s.startswith('0x')]
        self.ins(f"{op} {d}, " + ", ".join(str(s) for s in srcs) + (" " + mods if mods else ""), kind, wr=d, rd=rd)

    def salu(self, text, wr=None, rd=None):
        self.ins(text, 'salu', wr=wr, rd=rd)

    def wait(self, vm=None, lgkm=None):
        t = "s_waitcnt"
        if vm is not None:
            t += f" vmcnt({vm})"
        if lgkm is not None:
            t += f" lgkmcnt({lgkm})"
        self.ins(t, 'other')


def gen(NW=8, TPW=128, D=16, flags="nt", exact_int=True, nocompute=False):
    assert D % 8 == 0 and TPW % D == 0 and TPW in (32, 64, 128)
    CHK = 4
    RPG = 128 // NW
    assert RPG % D == 0 or D % RPG == 0
    assert D == RPG, "one scale group per loop iteration"
    JUMP = NW * CHK * 1024
    TPG = NW * TPW
    NSPLIT = 4096 // TPG
    NWG = 64 * NSPLIT
    NITER = TPW // D
    WREG = 2048
    LDS = NW * WREG + NW * 16
    ML_OFF = NW * WREG
    NT = TPW // 32
    C_EXP = 0.0625 * 1.4426950408889634
    import struct
    cexp_hex = "0x%08x" % struct.unpack('<I', struct.pack('<f', C_EXP))[0]

    S_K = 24
    S_V = 28
    S_T = 32
    sBH, sSPLIT, sWAVE, sROW, sTMP, sTMP2, sLOOP, sLANE = 36, 37, 38, 39, 40, 41, 42, 43
    sZ0, sZ1, sS0, sS1, sRA, sRB = 44, 45, 46, 47, 48, 49
    sCEXP = 50
    sPRE = 51
    sWS = 52
    sWGROW = 58
    sSCO = 59
    S_KS = 60
    S_KZ = 64
    vTID = 0
    vOFF = 1
    vLANE = 2
    vZ = 3
    vS = 4
    vLA = 5
    vAA = 6
    vL8 = 7
    vT = 8
    vKZ = 24
    vKS = 28
    vQ = 32
    vM = 36
    vL = 37
    vX = 38
    vA = 40
    vB = 44
    vACC = 60
    vRING = 76
    NV = vRING + 4 * D

    e = Em()
    R = lambda i: vRING + 4 * (i % D)

    def v(i):
        return f"v{i}"

    def vr(a, n):
        return f"v[{a}:{a+n-1}]"

    def sr(a, n):
        return f"s[{a}:{a+n-1}]"

    kname = "attn_part_kernel"
    e.raw(f".globl {kname}")
    e.raw(".p2align 8")
    e.raw(f".type {kname},@function")
    e.label(kname)
    e.salu(f"s_cmp_ge_u32 s2, {NWG}", rd='s2')
    e.ins("s_cbranch_scc1 L_part_end", 'other')
    e.salu("s_load_dwordx16 s[4:19], s[0:1], 0", wr='s[4:19]')
    e.salu("s_load_dwordx4 s[20:23], s[0:1], 64", wr='s[20:23]')
    e.valu("v_and_b32", v(vLANE), 63, v(vTID))
    e.valu("v_lshrrev_b32", v(vX), 6, v(vTID))
    e.valu("v_lshlrev_b32", v(vOFF), 4, v(vLANE))
    e.ins(f"v_readfirstlane_b32 s{sWAVE}, v{vX}", 'readlane', wr=f"s{sWAVE}", rd=v(vX))
    import math
    lg = int(math.log2(NSPLIT))
    e.salu(f"s_lshr_b32 s{sBH}, s2, {lg}", wr=f"s{sBH}")
    e.salu(f"s_and_b32 s{sSPLIT}, s2, {NSPLIT-1}", wr=f"s{sSPLIT}")
    e.nop(4)
    e.salu(f"s_mul_i32 s{sTMP}, s{sSPLIT}, {TPG}")
    e.salu(f"s_lshl_b32 s{sTMP2}, s{sBH}, 12")
    e.salu(f"s_add_u32 s{sWGROW}, s{sTMP2}, s{sTMP}")
    e.salu(f"s_mul_i32 s{sTMP2}, s{sWAVE}, {CHK}")
    e.salu(f"s_add_u32 s{sROW}, s{sWGROW}, s{sTMP2}")
    e.salu(f"s_lshl_b32 s{sPRE}, s{sROW}, 10")
    e.salu(f"s_mov_b32 s{sCEXP}, {cexp_hex}")
    e.wait(lgkm=0)
    for (S, p) in ((S_K, 6), (S_V, 8)):
        e.salu(f"s_mov_b32 s{S}, s{p}")
        e.salu(f"s_and_b32 s{S+1}, s{p+1}, 0xffff")
        e.salu(f"s_mov_b32 s{S+2}, 0x10000000")
        e.salu(f"s_mov_b32 s{S+3}, 0x00020000")
    e.salu(f"s_mov_b32 s{sWS}, s22")
    e.salu(f"s_and_b32 s{sWS+1}, s23, 0xffff")
    e.salu(f"s_mov_b32 s{sWS+2}, 0x40000000")
    e.salu(f"s_mov_b32 s{sWS+3}, 0x00020000")

    fl = (" " + flags) if flags else ""

    def load_row(i, srd, off_imm):
        e.ins(f"buffer_load_dwordx4 {vr(R(i),4)}, v{vOFF}, {sr(srd,4)}, s{sPRE} offen offset:{off_imm}{fl}",
              'vmem', wr=vr(R(i), 4), rd=[v(vOFF), sr(srd, 4), f"s{sPRE}"])

    e.valu("v_lshlrev_b32", v(vX), 3, v(vLANE))
    e.valu("v_lshlrev_b32", v(vX + 1), 2, v(vLANE))

    def small_srd(p, nbytes):
        e.salu(f"s_mov_b32 s{S_T}, s{p}")
        e.salu(f"s_and_b32 s{S_T+1}, s{p+1}, 0xffff")
        e.salu(f"s_mov_b32 s{S_T+2}, {nbytes}")
        e.salu(f"s_mov_b32 s{S_T+3}, 0x00020000")

    small_srd(4, 8 * 16 * 256 * 2)
    e.salu(f"s_lshl_b32 s{sTMP2}, s{sBH}, 10")
    e.ins(f"buffer_load_dwordx2 {vr(vQ,2)}, v{vX}, {sr(S_T,4)}, s{sTMP2} offen", 'vmem', wr=vr(vQ, 2), rd=v(vX))
    e.ins(f"buffer_load_dwordx2 {vr(vQ+2,2)}, v{vX}, {sr(S_T,4)}, s{sTMP2} offen offset:512", 'vmem', wr=vr(vQ + 2, 2), rd=v(vX))
    e.salu(f"s_lshr_b32 s{sSCO}, s{sWGROW}, 7")
    e.salu(f"s_lshl_b32 s{sSCO}, s{sSCO}, 9")
    for (S, p) in ((S_KS, 10), (S_KZ, 12)):
        e.salu(f"s_mov_b32 s{S}, s{p}")
        e.salu(f"s_and_b32 s{S+1}, s{p+1}, 0xffff")
        e.salu(f"s_mov_b32 s{S+2}, {8 * 8 * 32 * 256 * 2}")
        e.salu(f"s_mov_b32 s{S+3}, 0x00020000")
    e.valu("v_mov_b32", v(vL8), v(vX))

    def load_scales():
        e.ins(f"buffer_load_dwordx2 {vr(vA,2)}, v{vL8}, {sr(S_KS,4)}, s{sSCO} offen", 'vmem', wr=vr(vA, 2), rd=v(vL8))
        e.ins(f"buffer_load_dwordx2 {vr(vA+2,2)}, v{vL8}, {sr(S_KZ,4)}, s{sSCO} offen", 'vmem', wr=vr(vA + 2, 2), rd=v(vL8))
        e.salu(f"s_add_u32 s{sSCO}, s{sSCO}, 512", wr=f"s{sSCO}")

    def unpack_scales():
        for (b, src) in ((vKS, vA), (vKZ, vA + 2)):
            e.valu("v_lshlrev_b32", v(b), 16, v(src))
            e.valu("v_and_b32", v(b + 1), "0xffff0000", v(src))
            e.valu("v_lshlrev_b32", v(b + 2), 16, v(src + 1))
            e.valu("v_and_b32", v(b + 3), "0xffff0000", v(src + 1))

    load_scales()
    e.valu("v_lshrrev_b32", v(vT), 1, v(vLANE))
    e.valu("v_mul_u32_u24", v(vT), NW * CHK * 2, v(vT))
    e.valu("v_and_b32", v(vT + 1), 1, v(vLANE))
    e.valu("v_lshl_add_u32", v(vT), v(vT + 1), 2, v(vT))
    e.salu(f"s_lshl_b32 s{sTMP2}, s{sROW}, 1")
    small_srd(14, 8 * 8 * 4096 * 2)
    e.ins(f"buffer_load_dword v{vS}, v{vT}, {sr(S_T,4)}, s{sTMP2} offen", 'vmem', wr=v(vS), rd=v(vT))
    small_srd(16, 8 * 8 * 4096 * 2)
    e.ins(f"buffer_load_dword v{vZ}, v{vT}, {sr(S_T,4)}, s{sTMP2} offen", 'vmem', wr=v(vZ), rd=v(vT))

    def issue_rows(first, n, srd):
        for j in range(n):
            load_row(first + j, srd, (j % 4) * 1024)
            if j % 4 == 3:
                e.salu(f"s_add_u32 s{sPRE}, s{sPRE}, {JUMP}", wr=f"s{sPRE}")

    issue_rows(0, D, S_K)

    e.salu(f"s_mul_i32 s{sTMP}, s{sWAVE}, {WREG}")
    e.valu("v_lshrrev_b32", v(vT), 5, v(vLANE))
    e.valu("v_mul_u32_u24", v(vLA), TPW * 4, v(vT))
    e.valu("v_bfe_u32", v(vT), v(vLANE), 4, 1)
    e.valu("v_lshl_add_u32", v(vLA), v(vT), 2, v(vLA))
    e.valu("v_bfe_u32", v(vT), v(vLANE), 3, 1)
    e.valu("v_lshl_add_u32", v(vLA), v(vT), 3, v(vLA))
    e.valu("v_bfe_u32", v(vT), v(vLANE), 2, 1)
    e.valu("v_lshl_add_u32", v(vLA), v(vT), 4, v(vLA))
    e.valu("v_add_u32", v(vLA), f"s{sTMP}", v(vLA))
    P_OFF = 1024
    Z_OFF = 1536
    e.valu("v_and_b32", v(vT), 15, v(vLANE))
    e.valu("v_lshrrev_b32", v(vT + 1), 1, v(vT))
    e.valu("v_lshrrev_b32", v(vT + 2), 4, v(vLANE))
    e.ins(f"v_cmp_eq_u32 vcc, v{vT+1}, v{vT+2}", 'valu', wr='vcc', rd=[v(vT + 1), v(vT + 2)])
    e.valu("v_and_b32", v(vT + 3), 1, v(vLANE))
    e.valu("v_mul_u32_u24", v(vT + 3), TPW * 2, v(vT + 3))
    e.valu("v_add_u32", v(vT + 3), P_OFF, v(vT + 3))
    e.valu("v_mov_b32", v(vT + 4), Z_OFF)
    e.ins(f"v_cndmask_b32 v{vAA}, v{vT+4}, v{vT+3}, vcc", 'valu', wr=v(vAA), rd=[v(vT + 4), v(vT + 3), 'vcc'])
    e.valu("v_add_u32", v(vAA), f"s{sTMP}", v(vAA))
    e.valu("v_add_u32", v(vT), f"s{sTMP}", v(vX + 1))
    e.valu("v_mov_b32", v(vT + 1), 0)
    e.ins(f"ds_write_b32 v{vT}, v{vT+1} offset:{Z_OFF}", 'ds', rd=[v(vT), v(vT + 1)])
    for i in range(16):
        e.valu("v_mov_b32", v(vACC + i), 0)


    def k_row(i, j, pre):
        r = R(i)
        t = vT + 4 * (j % 2)
        kk = vT + 8 + 2 * (j % 2)
        a0, a1 = vB + 2 * j, vB + 2 * j + 1
        e.wait(vm=pre['cnt'])
        for c in range(4):
            e.valu("v_cvt_f32_i32", v(t + c), v(r + c))
        pre['fn']()
        if nocompute:
            e.valu("v_add_f32", v(a0), v(t), v(t + 1))
            e.valu("v_add_f32", v(a1), v(t + 2), v(t + 3))
            return
        if exact_int:
            for c in range(4):
                e.valu("v_cvt_pk_bf16_f32", v(t + c), 0, v(t + c))
        for c in range(4):
            e.valu("v_sub_f32", v(t + c), v(t + c), v(vKZ + c))
        for c in range(4):
            e.valu("v_cvt_pk_bf16_f32", v(t + c), 0, v(t + c))
        for c in range(4):
            e.valu("v_mul_f32", v(t + c), v(t + c), v(vKS + c))
        e.valu("v_cvt_pk_bf16_f32", v(kk), v(t), v(t + 1))
        e.valu("v_cvt_pk_bf16_f32", v(kk + 1), v(t + 2), v(t + 3))
        e.ins(f"v_dot2_f32_bf16 v{a0}, v{kk}, v{vQ}, 0", 'dot', wr=v(a0), rd=[v(kk), v(vQ)], ab=[v(kk), v(vQ)])
        e.ins(f"v_dot2_f32_bf16 v{a1}, v{kk}, v{vQ+2}, 0", 'dot', wr=v(a1), rd=[v(kk), v(vQ + 2)], ab=[v(kk), v(vQ + 2)])
        e.ins(f"v_dot2_f32_bf16 v{a0}, v{kk+1}, v{vQ+1}, v{a0}", 'dot', wr=v(a0), rd=[v(kk + 1), v(vQ + 1), v(a0)], ab=[v(kk + 1), v(vQ + 1)])
        e.ins(f"v_dot2_f32_bf16 v{a1}, v{kk+1}, v{vQ+3}, v{a1}", 'dot', wr=v(a1), rd=[v(kk + 1), v(vQ + 3), v(a1)], ab=[v(kk + 1), v(vQ + 3)])

    def perm(op, a, b):
        e.ins(f"{op} v{a}, v{b}", 'perm', wr=[v(a), v(b)], rd=[v(a), v(b)])

    def dpp(op, d, s0, s1, ctl):
        e.ins(f"{op}_dpp v{d}, v{s0}, v{s1} {ctl}", 'dpp', wr=v(d), rd=[v(s0), v(s1), v(d)])

    def k_reduce(lds_off):
        for j in range(8):
            perm("v_permlane32_swap_b32", vB + 2 * j, vB + 2 * j + 1)
        for j in range(8):
            e.valu("v_add_f32", v(vB + 2 * j), v(vB + 2 * j), v(vB + 2 * j + 1))
        for j in range(4):
            perm("v_permlane16_swap_b32", vB + 4 * j, vB + 4 * j + 2)
        for j in range(4):
            e.valu("v_add_f32", v(vB + 4 * j), v(vB + 4 * j), v(vB + 4 * j + 2))
        for j in range(2):
            X, Y = vB + 8 * j, vB + 8 * j + 4
            dpp("v_add_f32", X, X, X, "row_ror:8 row_mask:0xf bank_mask:0x3")
            dpp("v_add_f32", X, Y, Y, "row_ror:8 row_mask:0xf bank_mask:0xc")
        X, Y = vB, vB + 8
        dpp("v_add_f32", X, X, X, "row_shl:4 row_mask:0xf bank_mask:0x5")
        dpp("v_add_f32", X, Y, Y, "row_shr:4 row_mask:0xf bank_mask:0xa")
        dpp("v_add_f32", X, X, X, "quad_perm:[1,0,3,2] row_mask:0xf bank_mask:0xf")
        dpp("v_add_f32", X, X, X, "quad_perm:[2,3,0,1] row_mask:0xf bank_mask:0xf")
        e.ins(f"ds_write_b32 v{vLA}, v{X} offset:{lds_off}", 'ds', rd=[v(vLA), v(X)])

    def k_iter(srd_next, tail=False):
        e.wait(vm=D)
        unpack_scales()
        if not tail:
            load_scales()
        for i in range(D):
            def fn(i=i):
                load_row(i, srd_next, (i % 4) * 1024)
                if i % 4 == 3:
                    e.salu(f"s_add_u32 s{sPRE}, s{sPRE}, {JUMP}", wr=f"s{sPRE}")
            k_row(i, i % 8, {'cnt': D - 1 + (0 if tail else 2), 'fn': fn})
            if i % 8 == 7:
                k_reduce((i // 8) * 32)

    if NITER > 1:
        e.salu(f"s_mov_b32 s{sLOOP}, {NITER-1}")
        e.fence(4)
        e.label("L_kloop")
        k_iter(S_K)
        e.valu("v_add_u32", v(vLA), D * 4, v(vLA))
        e.salu(f"s_sub_u32 s{sLOOP}, s{sLOOP}, 1")
        e.salu(f"s_cmp_lg_u32 s{sLOOP}, 0")
        e.fence(4)
        e.ins("s_cbranch_scc1 L_kloop", 'other')
    e.salu(f"s_lshl_b32 s{sPRE}, s{sROW}, 10", wr=f"s{sPRE}")
    k_iter(S_V, tail=True)

    e.salu(f"s_mul_i32 s{sTMP}, s{sWAVE}, {WREG}")
    e.valu("v_lshlrev_b32", v(vX), int(math.log2(NT * 4)), v(vLANE))
    e.valu("v_add_u32", v(vX), f"s{sTMP}", v(vX))
    e.wait(lgkm=0)
    rdop = {1: "ds_read_b32", 2: "ds_read_b64", 4: "ds_read_b128"}[NT]
    e.ins(f"{rdop} {vr(vT,NT) if NT>1 else v(vT)}, v{vX}", 'ds', wr=vr(vT, NT), rd=v(vX))
    e.wait(lgkm=0)
    for i in range(NT):
        e.valu("v_cvt_pk_bf16_f32", v(vT + i), 0, v(vT + i))
    e.valu("v_mov_b32", v(vM), v(vT))
    for i in range(1, NT):
        e.valu("v_max_f32", v(vM), v(vM), v(vT + i))

    def allreduce32(op, reg, tmp):
        dpp(op, reg, reg, reg, "quad_perm:[1,0,3,2] row_mask:0xf bank_mask:0xf")
        dpp(op, reg, reg, reg, "quad_perm:[2,3,0,1] row_mask:0xf bank_mask:0xf")
        dpp(op, reg, reg, reg, "row_ror:4 row_mask:0xf bank_mask:0xf")
        dpp(op, reg, reg, reg, "row_ror:8 row_mask:0xf bank_mask:0xf")
        e.valu("v_mov_b32", v(tmp), v(reg))
        perm("v_permlane16_swap_b32", reg, tmp)
        e.valu(op, v(reg), v(reg), v(tmp))

    allreduce32("v_max_f32", vM, vX + 1)
    for i in range(NT):
        e.valu("v_sub_f32", v(vT + i), v(vT + i), v(vM))
    for i in range(NT):
        e.valu("v_mul_f32", v(vT + i), f"s{sCEXP}", v(vT + i))
    for i in range(NT):
        e.valu("v_exp_f32", v(vT + i), v(vT + i), kind='trans')
    e.valu("v_mov_b32", v(vL), v(vT))
    for i in range(1, NT):
        e.valu("v_add_f32", v(vL), v(vL), v(vT + i))
    allreduce32("v_add_f32", vL, vX + 1)
    e.valu("v_lshlrev_b32", v(vX), int(math.log2(NT * 2)), v(vLANE))
    e.valu("v_add_u32", v(vX), f"s{sTMP}", v(vX))
    if NT == 1:
        e.valu("v_cvt_pk_bf16_f32", v(vT + 4), v(vT), v(vT))
        e.ins(f"ds_write_b16 v{vX}, v{vT+4} offset:{P_OFF}", 'ds', rd=[v(vX), v(vT + 4)])
    elif NT == 2:
        e.valu("v_cvt_pk_bf16_f32", v(vT + 4), v(vT), v(vT + 1))
        e.ins(f"ds_write_b32 v{vX}, v{vT+4} offset:{P_OFF}", 'ds', rd=[v(vX), v(vT + 4)])
    else:
        e.valu("v_cvt_pk_bf16_f32", v(vT + 4), v(vT), v(vT + 1))
        e.valu("v_cvt_pk_bf16_f32", v(vT + 5), v(vT + 2), v(vT + 3))
        e.ins(f"ds_write_b64 v{vX}, {vr(vT+4,2)} offset:{P_OFF}", 'ds', rd=[v(vX), vr(vT + 4, 2)])
    e.wait(lgkm=0)

    e.salu(f"s_mov_b32 s{sLANE}, 0", wr=f"s{sLANE}")

    def v_iter(last):
        for i in range(D):
            j = i % 8
            r = R(i)
            t = vT + 4 * (j % 2)
            if j == 0:
                e.ins(f"ds_read_b128 {vr(vA,4)}, v{vAA} offset:{(i//8)*16}", 'ds', wr=vr(vA, 4), rd=v(vAA))
            if j % 2 == 0:
                e.ins(f"v_readlane_b32 s{sRA}, v{vZ}, s{sLANE}", 'readlane', wr=f"s{sRA}", rd=[v(vZ), f"s{sLANE}"], lanesel=f"s{sLANE}")
                e.ins(f"v_readlane_b32 s{sRB}, v{vS}, s{sLANE}", 'readlane', wr=f"s{sRB}", rd=[v(vS), f"s{sLANE}"], lanesel=f"s{sLANE}")
                e.salu(f"s_add_u32 s{sLANE}, s{sLANE}, 1", wr=f"s{sLANE}")
                e.nop(1)
                e.salu(f"s_lshl_b32 s{sZ0}, s{sRA}, 16", wr=f"s{sZ0}")
                e.salu(f"s_and_b32 s{sZ1}, s{sRA}, 0xffff0000", wr=f"s{sZ1}")
                e.salu(f"s_lshl_b32 s{sS0}, s{sRB}, 16", wr=f"s{sS0}")
                e.salu(f"s_and_b32 s{sS1}, s{sRB}, 0xffff0000", wr=f"s{sS1}")
            sz = sZ0 if j % 2 == 0 else sZ1
            ss = sS0 if j % 2 == 0 else sS1
            e.wait(vm=(D - 1 - i) if last else (D - 1))
            for c in range(4):
                e.valu("v_cvt_f32_i32", v(t + c), v(r + c))
            if not last:
                load_row(i, S_V, (i % 4) * 1024)
                if i % 4 == 3:
                    e.salu(f"s_add_u32 s{sPRE}, s{sPRE}, {JUMP}", wr=f"s{sPRE}")
            if nocompute:
                e.valu("v_add_f32", v(vACC), v(t), v(vACC))
                e.valu("v_add_f32", v(vACC + 1), v(t + 1), v(vACC + 1))
                e.valu("v_add_f32", v(vACC + 2), v(t + 2), v(vACC + 2))
                e.valu("v_add_f32", v(vACC + 3), v(t + 3), v(vACC + 3))
                continue
            if exact_int:
                for c in range(4):
                    e.valu("v_cvt_pk_bf16_f32", v(t + c), 0, v(t + c))
            for c in range(4):
                e.valu("v_subrev_f32", v(t + c), f"s{sz}", v(t + c))
            for c in range(4):
                e.valu("v_cvt_pk_bf16_f32", v(t + c), 0, v(t + c))
            for c in range(4):
                e.valu("v_mul_f32", v(t + c), f"s{ss}", v(t + c))
            if j % 2 == 1:
                for c in range(4):
                    e.valu("v_cvt_pk_bf16_f32", v(vB + 4 * c + j // 2), v(vT + c), v(vT + 4 + c))
            if j == 7:
                e.wait(lgkm=0)
                for c in range(4):
                    acc = vr(vACC + 4 * c, 4)
                    e.ins(f"v_mfma_f32_16x16x32_bf16 {acc}, {vr(vA,4)}, {vr(vB+4*c,4)}, {acc}", 'mfma',
                          wr=acc, rd=[vr(vA, 4), vr(vB + 4 * c, 4), acc], ab=[vr(vA, 4), vr(vB + 4 * c, 4)], c=acc)

    if NITER > 1:
        e.salu(f"s_mov_b32 s{sLOOP}, {NITER-1}")
        e.fence(4)
        e.label("L_vloop")
        v_iter(False)
        e.valu("v_add_u32", v(vAA), D * 2, v(vAA))
        e.salu(f"s_sub_u32 s{sLOOP}, s{sLOOP}, 1")
        e.salu(f"s_cmp_lg_u32 s{sLOOP}, 0")
        e.fence(4)
        e.ins("s_cbranch_scc1 L_vloop", 'other')
    v_iter(True)
    e.fence(10)

    e.valu("v_lshrrev_b32", v(vT), 4, v(vLANE))
    e.valu("v_lshlrev_b32", v(vT), 9, v(vT))
    e.valu("v_and_b32", v(vT + 1), 15, v(vLANE))
    e.valu("v_lshl_add_u32", v(vT), v(vT + 1), 4, v(vT))
    e.valu("v_add_u32", v(vT), f"s{sTMP}", v(vT))
    e.valu("v_lshrrev_b32", v(vT + 1), 5, v(vLANE))
    e.valu("v_lshlrev_b32", v(vT + 1), 3, v(vT + 1))
    e.salu(f"s_lshl_b32 s{sTMP2}, s{sWAVE}, 4")
    e.valu("v_add_u32", v(vT + 1), f"s{sTMP2}", v(vT + 1))
    e.ins(f"ds_write_b64 v{vT+1}, {vr(vM,2)} offset:{ML_OFF}", 'ds', rd=[v(vT + 1), vr(vM, 2)])
    for u in range(2):
        for h in range(2):
            q = vB + 4 * (2 * u + h)
            for c in range(4):
                e.valu("v_mov_b32", v(q + c), v(vACC + 4 * c + 2 * u + h))
    e.salu("s_mov_b32 exec_hi, 0")
    for u in range(2):
        for h in range(2):
            q = vB + 4 * (2 * u + h)
            e.ins(f"ds_write_b128 v{vT}, {vr(q,4)} offset:{h*1024+u*256}", 'ds', rd=[v(vT), vr(q, 4)])
    e.salu("s_mov_b64 exec, -1")
    e.wait(lgkm=0)
    e.ins("s_barrier", 'other')
    nthreads = NW * 64
    if nthreads > 512:
        e.salu(f"s_cmp_ge_u32 s{sWAVE}, 8")
        e.ins("s_cbranch_scc1 L_part_end", 'other')
    per = max(1, 512 // nthreads)
    for it in range(per):
        e.valu("v_add_u32", v(vX), it * nthreads, v(vTID))
        e.valu("v_lshrrev_b32", v(vT), 8, v(vX))
        e.valu("v_lshlrev_b32", v(vT + 1), 3, v(vT))
        e.valu("v_lshlrev_b32", v(vT + 2), 2, v(vX))
        mlb = vRING
        ob = vRING + 2 * NW
        for w in range(NW):
            e.ins(f"ds_read_b64 {vr(mlb+2*w,2)}, v{vT+1} offset:{ML_OFF+16*w}", 'ds', wr=vr(mlb + 2 * w, 2), rd=v(vT + 1))
        for w in range(NW):
            e.ins(f"ds_read_b32 v{ob+w}, v{vT+2} offset:{WREG*w}", 'ds', wr=v(ob + w), rd=v(vT + 2))
        e.wait(lgkm=0)
        e.valu("v_mov_b32", v(vM), v(mlb))
        for w in range(1, NW):
            e.valu("v_max_f32", v(vM), v(vM), v(mlb + 2 * w))
        for w in range(NW):
            e.valu("v_sub_f32", v(mlb + 2 * w), v(mlb + 2 * w), v(vM))
        for w in range(NW):
            e.valu("v_mul_f32", v(mlb + 2 * w), f"s{sCEXP}", v(mlb + 2 * w))
        for w in range(NW):
            e.valu("v_exp_f32", v(mlb + 2 * w), v(mlb + 2 * w), kind='trans')
        e.valu("v_mul_f32", v(vL), v(mlb), v(mlb + 1))
        e.valu("v_mul_f32", v(vT + 3), v(mlb), v(ob))
        for w in range(1, NW):
            e.valu("v_fmac_f32", v(vL), v(mlb + 2 * w), v(mlb + 2 * w + 1))
            e.valu("v_fmac_f32", v(vT + 3), v(mlb + 2 * w), v(ob + w))
        e.salu(f"s_lshl_b32 s{sTMP2}, s2, 11")
        e.ins(f"buffer_store_dword v{vT+3}, v{vT+2}, {sr(sWS,4)}, s{sTMP2} offen", 'vstore', rd=[v(vT + 3), v(vT + 2)])
        e.salu(f"s_lshl_b32 s{sTMP2}, s2, 4")
        e.salu(f"s_add_u32 s{sTMP2}, s{sTMP2}, 0x400000")
        e.valu("v_and_b32", v(vX + 1), 255, v(vX))
        e.ins(f"v_cmp_eq_u32 vcc, 0, v{vX+1}", 'valu', wr='vcc', rd=v(vX + 1))
        e.salu("s_and_saveexec_b64 s[56:57], vcc", rd='vcc')
        e.ins(f"s_cbranch_execz L_skipml{it}", 'other')
        e.ins(f"buffer_store_dwordx2 {vr(vM,2)}, v{vT+1}, {sr(sWS,4)}, s{sTMP2} offen", 'vstore', rd=[vr(vM, 2), v(vT + 1)])
        e.label(f"L_skipml{it}")
        e.salu("s_mov_b64 exec, s[56:57]")
        e.fence(3)
    e.label("L_part_end")
    e.ins("s_endpgm", 'other')

    k2 = "attn_comb_kernel"
    e.raw("")
    e.raw(f".globl {k2}")
    e.raw(".p2align 8")
    e.raw(f".type {k2},@function")
    e.label(k2)
    e.hist = []
    e.salu("s_cmp_ge_u32 s2, 64")
    e.ins("s_cbranch_scc1 L_comb_end", 'other')
    e.salu("s_load_dwordx2 s[4:5], s[0:1], 56")
    e.salu("s_load_dwordx2 s[6:7], s[0:1], 72")
    e.valu("v_lshrrev_b32", "v1", 8, "v0")
    e.valu("v_lshlrev_b32", "v1", 3, "v1")
    e.valu("v_lshlrev_b32", "v2", 2, "v0")
    e.valu("v_lshlrev_b32", "v3", 1, "v0")
    e.salu(f"s_mov_b32 s20, {cexp_hex}")
    e.wait(lgkm=0)
    e.salu("s_mov_b32 s8, s6")
    e.salu("s_and_b32 s9, s7, 0xffff")
    e.salu("s_mov_b32 s10, 0x40000000")
    e.salu("s_mov_b32 s11, 0x00020000")
    e.salu("s_mov_b32 s12, s4")
    e.salu("s_and_b32 s13, s5, 0xffff")
    e.salu(f"s_mov_b32 s14, {8*16*256*2}")
    e.salu("s_mov_b32 s15, 0x00020000")
    e.salu(f"s_mul_i32 s16, s2, {NSPLIT*2048}")
    e.salu(f"s_mul_i32 s17, s2, {NSPLIT*16}")
    e.salu("s_add_u32 s17, s17, 0x400000")
    CH = min(NSPLIT, 16)
    nch = NSPLIT // CH
    e.valu("v_mov_b32", "v4", "0xff800000")
    e.valu("v_mov_b32", "v5", 0)
    e.valu("v_mov_b32", "v6", 0)
    for ch in range(nch):
        for s in range(CH):
            e.ins(f"buffer_load_dwordx2 v[{10+2*s}:{11+2*s}], v1, s[8:11], s17 offen offset:{16*s}", 'vmem', wr=f"v[{10+2*s}:{11+2*s}]", rd='v1')
        for s in range(CH):
            e.ins(f"buffer_load_dword v{50+s}, v2, s[8:11], s16 offen offset:{(s%2)*2048}", 'vmem', wr=f"v{50+s}", rd='v2')
            if s % 2 == 1:
                e.salu("s_add_u32 s16, s16, 4096")
        if CH == 1:
            e.salu("s_add_u32 s16, s16, 2048")
        e.salu(f"s_add_u32 s17, s17, {16*CH}")
        e.wait(vm=0)
        e.valu("v_mov_b32", "v7", "v4")
        for s in range(CH):
            e.valu("v_max_f32", "v7", "v7", f"v{10+2*s}")
        e.valu("v_sub_f32", "v8", "v4", "v7")
        e.valu("v_mul_f32", "v8", "s20", "v8")
        e.valu("v_exp_f32", "v8", "v8", kind='trans')
        e.valu("v_mul_f32", "v5", "v5", "v8")
        e.valu("v_mul_f32", "v6", "v6", "v8")
        e.valu("v_mov_b32", "v4", "v7")
        for s in range(CH):
            e.valu("v_sub_f32", f"v{10+2*s}", f"v{10+2*s}", "v7")
        for s in range(CH):
            e.valu("v_mul_f32", f"v{10+2*s}", "s20", f"v{10+2*s}")
        for s in range(CH):
            e.valu("v_exp_f32", f"v{10+2*s}", f"v{10+2*s}", kind='trans')
        for s in range(CH):
            e.valu("v_fmac_f32", "v5", f"v{10+2*s}", f"v{11+2*s}")
            e.valu("v_fmac_f32", "v6", f"v{10+2*s}", f"v{50+s}")
    e.valu("v_rcp_f32", "v8", "v5", kind='trans')
    e.valu("v_mul_f32", "v6", "v6", "v8")
    e.valu("v_cvt_pk_bf16_f32", "v6", "v6", "v6")
    e.salu("s_lshl_b32 s16, s2, 10")
    e.ins("buffer_store_short v6, v3, s[12:15], s16 offen", 'vstore', rd=['v6', 'v3'])
    e.label("L_comb_end")
    e.ins("s_endpgm", 'other')

    nv_alloc = ((NV + 7) // 8) * 8
    hdr = open("cdna_kernels/" + NAME + ".s.ref").read().split("; @launch")[0]
    out = hdr
    out += f"; @launch kernel=attn_part_kernel grid=({NWG},1,1) block=({NW*64},1,1) lds={LDS}\n"
    out += f"; @launch kernel=attn_comb_kernel grid=(64,1,1) block=(512,1,1) lds=0\n"
    out += f"; params: NW={NW} TPW={TPW} D={D} flags={flags} exact_int={exact_int}\n"
    out += '.amdgcn_target "amdgcn-amd-amdhsa--gfx950"\n.text\n'
    out += "\n".join(e.lines) + "\n"
    out += '.section .rodata,"a"\n'
    for (k, nv, ns) in ((kname, nv_alloc, 72), (k2, 72, 32)):
        out += f""".p2align 6
.amdhsa_kernel {k}
  .amdhsa_next_free_vgpr {nv}
  .amdhsa_next_free_sgpr {ns}
  .amdhsa_accum_offset {nv}
  .amdhsa_group_segment_fixed_size 0
  .amdhsa_kernarg_size 80
  .amdhsa_user_sgpr_count 2
  .amdhsa_user_sgpr_kernarg_segment_ptr 1
  .amdhsa_system_sgpr_workgroup_id_x 1
  .amdhsa_float_denorm_mode_32 3
.end_amdhsa_kernel
"""
    return out


if __name__ == "__main__":
    ap = argparse.ArgumentParser()
    ap.add_argument("--nw", type=int, default=8)
    ap.add_argument("--tpw", type=int, default=128)
    ap.add_argument("--d", type=int, default=16)
    ap.add_argument("--flags", default="nt")
    ap.add_argument("--noexact", action="store_true")
    ap.add_argument("--nocompute", action="store_true")
    ap.add_argument("-o", default="cdna_kernels/" + NAME + ".s")
    a = ap.parse_args()
    s = gen(a.nw, a.tpw, a.d, a.flags, not a.noexact, a.nocompute)
    open(a.o, "w").write(s)
```

```python
import sys, argparse

NAME = "standalone__kv_cache_quant_int4_int2_kv_with_per_channel_or_per_token_scales__decode"


def regs(spec):
    out = []
    if isinstance(spec, (list, tuple)):
        for s in spec:
            out += regs(s)
        return out
    if spec is None:
        return []
    if '[' in spec:
        p = spec[0]
        a, b = spec[2:-1].split(':')
        return [f"{p}{i}" for i in range(int(a), int(b) + 1)]
    return [spec]


VALU_KINDS = ('valu', 'trans', 'dot', 'dpp', 'perm', 'readlane')


class Em:
    def __init__(self):
        self.lines = []
        self.pos = 0
        self.hist = []

    def raw(self, text):
        self.lines.append(text)

    def comment(self, text):
        self.lines.append("    ; " + text)

    def label(self, name):
        self.lines.append(name + ":")

    def nop(self, n):
        while n > 0:
            k = min(n, 16)
            self.lines.append(f"    s_nop {k-1}")
            self.pos += k
            n -= k

    def fence(self, n=10):
        self.nop(n)
        self.hist = []

    def need(self, kind, wr, rd, extra):
        req = 0
        for (p, pk, pw, pr, pe) in self.hist:
            dist = self.pos - p - 1
            n = 0
            wr_hit_rd = pw & rd
            wr_hit_wr = pw & wr
            vw = {r for r in wr_hit_rd if r[0] == 'v'}
            sw = {r for r in wr_hit_rd if r[0] == 's' or r == 'vcc'}
            if pk in VALU_KINDS:
                if vw:
                    if kind == 'dpp':
                        n = max(n, 2)
                    if kind == 'perm':
                        n = max(n, 2)
                    if kind == 'readlane':
                        n = max(n, 1)
                    if kind == 'mfma':
                        n = max(n, 2)
                    if pk == 'trans' and kind in VALU_KINDS + ('mfma',) and kind != 'trans':
                        n = max(n, 1)
                if pk == 'dot':
                    if kind != 'dot':
                        if vw or {r for r in wr_hit_wr if r[0] == 'v'}:
                            n = max(n, 3)
                    else:
                        if pw & extra.get('ab', set()):
                            n = max(n, 3)
                if sw:
                    if kind in VALU_KINDS + ('mfma',):
                        n = max(n, 2)
                    if kind == 'readlane' and (pw & extra.get('lanesel', set())):
                        n = max(n, 4)
                    if kind in ('vmem', 'vstore'):
                        n = max(n, 5)
            if pk == 'mfma':
                if kind == 'mfma':
                    if pw & extra.get('ab', set()):
                        n = max(n, 8)
                    c = extra.get('c', set())
                    if (pw & c) and pw != c:
                        n = max(n, 6)
                else:
                    if wr_hit_rd or wr_hit_wr:
                        n = max(n, 8)
                    if kind in VALU_KINDS and (pe.get('c', set()) & wr):
                        n = max(n, 3)
            if pk == 'vstore':
                if pe.get('data', set()) & wr:
                    n = max(n, 2)
            if pk == 'salu' and 'm0' in pw and ('m0' in rd):
                n = max(n, 1)
            if n > dist:
                req = max(req, n - dist)
        return req

    def ins(self, text, kind, wr=None, rd=None, **extra):
        wr = set(regs(wr))
        rd = set(regs(rd))
        ex = {k: set(regs(v)) for k, v in extra.items()}
        n = self.need(kind, wr, rd, ex)
        if n:
            self.nop(n)
        self.lines.append("    " + text)
        self.hist.append((self.pos, kind, wr, rd, ex))
        self.pos += 1
        if len(self.hist) > 24:
            self.hist = self.hist[-24:]

    def valu(self, op, d, *srcs, kind='valu', mods=''):
        rd = [s.lstrip('-') for s in srcs if isinstance(s, str) and s and (s.lstrip('-')[0] in 'vs') and not s.startswith('0x')]
        self.ins(f"{op} {d}, " + ", ".join(str(s) for s in srcs) + (" " + mods if mods else ""), kind, wr=d, rd=rd)

    def salu(self, text, wr=None, rd=None):
        self.ins(text, 'salu', wr=wr, rd=rd)

    def wait(self, vm=None, lgkm=None):
        t = "s_waitcnt"
        if vm is not None:
            t += f" vmcnt({vm})"
        if lgkm is not None:
            t += f" lgkmcnt({lgkm})"
        self.ins(t, 'other')


def gen(NW=8, TPW=128, D=16, flags="nt", exact_int=True, nocompute=False, single=True):
    assert D % 8 == 0 and TPW % D == 0 and TPW in (32, 64, 128)
    CHK = 4
    RPG = 128 // NW
    assert RPG % D == 0 or D % RPG == 0
    assert D == RPG, "one scale group per loop iteration"
    JUMP = NW * CHK * 1024
    TPG = NW * TPW
    NSPLIT = 4096 // TPG
    NWG = 64 * NSPLIT
    NITER = TPW // D
    WREG = 2048
    LDS = NW * WREG + NW * 16
    ML_OFF = NW * WREG
    NT = TPW // 32
    C_EXP = 0.0625 * 1.4426950408889634
    import struct
    cexp_hex = "0x%08x" % struct.unpack('<I', struct.pack('<f', C_EXP))[0]

    S_K = 24
    S_V = 28
    S_T = 32
    sBH, sSPLIT, sWAVE, sROW, sTMP, sTMP2, sLOOP, sLANE = 36, 37, 38, 39, 40, 41, 42, 43
    sZ0, sZ1, sS0, sS1, sRA, sRB = 44, 45, 46, 47, 48, 49
    sCEXP = 50
    sPRE = 51
    sWS = 52
    sWGROW = 58
    sSCO = 59
    S_KS = 60
    S_KZ = 64
    vTID = 0
    vOFF = 1
    vLANE = 2
    vZ = 3
    vS = 4
    vLA = 5
    vAA = 6
    vL8 = 7
    vT = 8
    vKZ = 24
    vKS = 28
    vQ = 32
    vM = 36
    vL = 37
    vX = 38
    vA = 40
    vB = 44
    vACC = 60
    vRING = 76
    NV = vRING + 4 * D

    e = Em()
    R = lambda i: vRING + 4 * (i % D)

    def v(i):
        return f"v{i}"

    def vr(a, n):
        return f"v[{a}:{a+n-1}]"

    def sr(a, n):
        return f"s[{a}:{a+n-1}]"

    kname = (NAME + "_kernel") if single else "attn_part_kernel"
    e.raw(f".globl {kname}")
    e.raw(".p2align 8")
    e.raw(f".type {kname},@function")
    e.label(kname)
    e.salu(f"s_cmp_ge_u32 s2, {NWG}", rd='s2')
    e.ins("s_cbranch_scc1 L_part_end", 'other')
    e.salu("s_load_dwordx16 s[4:19], s[0:1], 0", wr='s[4:19]')
    e.salu("s_load_dwordx4 s[20:23], s[0:1], 64", wr='s[20:23]')
    e.valu("v_and_b32", v(vLANE), 63, v(vTID))
    e.valu("v_lshrrev_b32", v(vX), 6, v(vTID))
    e.valu("v_lshlrev_b32", v(vOFF), 4, v(vLANE))
    e.ins(f"v_readfirstlane_b32 s{sWAVE}, v{vX}", 'readlane', wr=f"s{sWAVE}", rd=v(vX))
    import math
    lg = int(math.log2(NSPLIT))
    e.salu(f"s_lshr_b32 s{sBH}, s2, {lg}", wr=f"s{sBH}")
    e.salu(f"s_and_b32 s{sSPLIT}, s2, {NSPLIT-1}", wr=f"s{sSPLIT}")
    e.nop(4)
    e.salu(f"s_mul_i32 s{sTMP}, s{sSPLIT}, {TPG}")
    e.salu(f"s_lshl_b32 s{sTMP2}, s{sBH}, 12")
    e.salu(f"s_add_u32 s{sWGROW}, s{sTMP2}, s{sTMP}")
    e.salu(f"s_mul_i32 s{sTMP2}, s{sWAVE}, {CHK}")
    e.salu(f"s_add_u32 s{sROW}, s{sWGROW}, s{sTMP2}")
    e.salu(f"s_lshl_b32 s{sPRE}, s{sROW}, 10")
    e.salu(f"s_mov_b32 s{sCEXP}, {cexp_hex}")
    e.wait(lgkm=0)
    for (S, p) in ((S_K, 6), (S_V, 8)):
        e.salu(f"s_mov_b32 s{S}, s{p}")
        e.salu(f"s_and_b32 s{S+1}, s{p+1}, 0xffff")
        e.salu(f"s_mov_b32 s{S+2}, 0x10000000")
        e.salu(f"s_mov_b32 s{S+3}, 0x00020000")
    e.salu(f"s_mov_b32 s{sWS}, s22")
    e.salu(f"s_and_b32 s{sWS+1}, s23, 0xffff")
    e.salu(f"s_mov_b32 s{sWS+2}, 0x40000000")
    e.salu(f"s_mov_b32 s{sWS+3}, 0x00020000")

    fk, fv = (flags.split("/") + [flags])[:2] if "/" in flags else (flags, flags)

    def load_row(i, srd, off_imm):
        fl = fk if srd == S_K else fv
        fl = (" " + fl) if fl else ""
        e.ins(f"buffer_load_dwordx4 {vr(R(i),4)}, v{vOFF}, {sr(srd,4)}, s{sPRE} offen offset:{off_imm}{fl}",
              'vmem', wr=vr(R(i), 4), rd=[v(vOFF), sr(srd, 4), f"s{sPRE}"])

    e.valu("v_lshlrev_b32", v(vX), 3, v(vLANE))
    e.valu("v_lshlrev_b32", v(vX + 1), 2, v(vLANE))

    def small_srd(p, nbytes):
        e.salu(f"s_mov_b32 s{S_T}, s{p}")
        e.salu(f"s_and_b32 s{S_T+1}, s{p+1}, 0xffff")
        e.salu(f"s_mov_b32 s{S_T+2}, {nbytes}")
        e.salu(f"s_mov_b32 s{S_T+3}, 0x00020000")

    small_srd(4, 8 * 16 * 256 * 2)
    e.salu(f"s_lshl_b32 s{sTMP2}, s{sBH}, 10")
    e.ins(f"buffer_load_dwordx2 {vr(vQ,2)}, v{vX}, {sr(S_T,4)}, s{sTMP2} offen", 'vmem', wr=vr(vQ, 2), rd=v(vX))
    e.ins(f"buffer_load_dwordx2 {vr(vQ+2,2)}, v{vX}, {sr(S_T,4)}, s{sTMP2} offen offset:512", 'vmem', wr=vr(vQ + 2, 2), rd=v(vX))
    e.salu(f"s_lshr_b32 s{sSCO}, s{sWGROW}, 7")
    e.salu(f"s_lshl_b32 s{sSCO}, s{sSCO}, 9")
    for (S, p) in ((S_KS, 10), (S_KZ, 12)):
        e.salu(f"s_mov_b32 s{S}, s{p}")
        e.salu(f"s_and_b32 s{S+1}, s{p+1}, 0xffff")
        e.salu(f"s_mov_b32 s{S+2}, {8 * 8 * 32 * 256 * 2}")
        e.salu(f"s_mov_b32 s{S+3}, 0x00020000")
    e.valu("v_mov_b32", v(vL8), v(vX))

    def load_scales():
        e.ins(f"buffer_load_dwordx2 {vr(vA,2)}, v{vL8}, {sr(S_KS,4)}, s{sSCO} offen", 'vmem', wr=vr(vA, 2), rd=v(vL8))
        e.ins(f"buffer_load_dwordx2 {vr(vA+2,2)}, v{vL8}, {sr(S_KZ,4)}, s{sSCO} offen", 'vmem', wr=vr(vA + 2, 2), rd=v(vL8))
        e.salu(f"s_add_u32 s{sSCO}, s{sSCO}, 512", wr=f"s{sSCO}")

    def unpack_scales():
        for (b, src) in ((vKS, vA), (vKZ, vA + 2)):
            e.valu("v_lshlrev_b32", v(b), 16, v(src))
            e.valu("v_and_b32", v(b + 1), "0xffff0000", v(src))
            e.valu("v_lshlrev_b32", v(b + 2), 16, v(src + 1))
            e.valu("v_and_b32", v(b + 3), "0xffff0000", v(src + 1))

    load_scales()
    e.valu("v_lshrrev_b32", v(vT), 1, v(vLANE))
    e.valu("v_mul_u32_u24", v(vT), NW * CHK * 2, v(vT))
    e.valu("v_and_b32", v(vT + 1), 1, v(vLANE))
    e.valu("v_lshl_add_u32", v(vT), v(vT + 1), 2, v(vT))
    e.salu(f"s_lshl_b32 s{sTMP2}, s{sROW}, 1")
    small_srd(14, 8 * 8 * 4096 * 2)
    e.ins(f"buffer_load_dword v{vS}, v{vT}, {sr(S_T,4)}, s{sTMP2} offen", 'vmem', wr=v(vS), rd=v(vT))
    small_srd(16, 8 * 8 * 4096 * 2)
    e.ins(f"buffer_load_dword v{vZ}, v{vT}, {sr(S_T,4)}, s{sTMP2} offen", 'vmem', wr=v(vZ), rd=v(vT))

    def issue_rows(first, n, srd):
        for j in range(n):
            load_row(first + j, srd, (j % 4) * 1024)
            if j % 4 == 3:
                e.salu(f"s_add_u32 s{sPRE}, s{sPRE}, {JUMP}", wr=f"s{sPRE}")

    issue_rows(0, D, S_K)

    e.salu(f"s_mul_i32 s{sTMP}, s{sWAVE}, {WREG}")
    e.valu("v_lshrrev_b32", v(vT), 5, v(vLANE))
    e.valu("v_mul_u32_u24", v(vLA), TPW * 4, v(vT))
    e.valu("v_bfe_u32", v(vT), v(vLANE), 4, 1)
    e.valu("v_lshl_add_u32", v(vLA), v(vT), 2, v(vLA))
    e.valu("v_bfe_u32", v(vT), v(vLANE), 3, 1)
    e.valu("v_lshl_add_u32", v(vLA), v(vT), 3, v(vLA))
    e.valu("v_bfe_u32", v(vT), v(vLANE), 2, 1)
    e.valu("v_lshl_add_u32", v(vLA), v(vT), 4, v(vLA))
    e.valu("v_add_u32", v(vLA), f"s{sTMP}", v(vLA))
    P_OFF = 1024
    Z_OFF = 1536
    e.valu("v_and_b32", v(vT), 15, v(vLANE))
    e.valu("v_lshrrev_b32", v(vT + 1), 1, v(vT))
    e.valu("v_lshrrev_b32", v(vT + 2), 4, v(vLANE))
    e.ins(f"v_cmp_eq_u32 vcc, v{vT+1}, v{vT+2}", 'valu', wr='vcc', rd=[v(vT + 1), v(vT + 2)])
    e.valu("v_and_b32", v(vT + 3), 1, v(vLANE))
    e.valu("v_mul_u32_u24", v(vT + 3), TPW * 2, v(vT + 3))
    e.valu("v_add_u32", v(vT + 3), P_OFF, v(vT + 3))
    e.valu("v_mov_b32", v(vT + 4), Z_OFF)
    e.ins(f"v_cndmask_b32 v{vAA}, v{vT+4}, v{vT+3}, vcc", 'valu', wr=v(vAA), rd=[v(vT + 4), v(vT + 3), 'vcc'])
    e.valu("v_add_u32", v(vAA), f"s{sTMP}", v(vAA))
    e.valu("v_add_u32", v(vT), f"s{sTMP}", v(vX + 1))
    e.valu("v_mov_b32", v(vT + 1), 0)
    e.ins(f"ds_write_b32 v{vT}, v{vT+1} offset:{Z_OFF}", 'ds', rd=[v(vT), v(vT + 1)])
    for i in range(16):
        e.valu("v_mov_b32", v(vACC + i), 0)


    def k_row(i, j, pre):
        r = R(i)
        t = vT + 4 * (j % 2)
        kk = vT + 8 + 2 * (j % 2)
        a0, a1 = vB + 2 * j, vB + 2 * j + 1
        e.wait(vm=pre['cnt'])
        for c in range(4):
            e.valu("v_cvt_f32_i32", v(t + c), v(r + c))
        pre['fn']()
        if nocompute:
            e.valu("v_add_f32", v(a0), v(t), v(t + 1))
            e.valu("v_add_f32", v(a1), v(t + 2), v(t + 3))
            return
        if exact_int:
            for c in range(4):
                e.valu("v_cvt_pk_bf16_f32", v(t + c), 0, v(t + c))
        for c in range(4):
            e.valu("v_sub_f32", v(t + c), v(t + c), v(vKZ + c))
        for c in range(4):
            e.valu("v_cvt_pk_bf16_f32", v(t + c), 0, v(t + c))
        for c in range(4):
            e.valu("v_mul_f32", v(t + c), v(t + c), v(vKS + c))
        e.valu("v_cvt_pk_bf16_f32", v(kk), v(t), v(t + 1))
        e.valu("v_cvt_pk_bf16_f32", v(kk + 1), v(t + 2), v(t + 3))
        e.ins(f"v_dot2_f32_bf16 v{a0}, v{kk}, v{vQ}, 0", 'dot', wr=v(a0), rd=[v(kk), v(vQ)], ab=[v(kk), v(vQ)])
        e.ins(f"v_dot2_f32_bf16 v{a1}, v{kk}, v{vQ+2}, 0", 'dot', wr=v(a1), rd=[v(kk), v(vQ + 2)], ab=[v(kk), v(vQ + 2)])
        e.ins(f"v_dot2_f32_bf16 v{a0}, v{kk+1}, v{vQ+1}, v{a0}", 'dot', wr=v(a0), rd=[v(kk + 1), v(vQ + 1), v(a0)], ab=[v(kk + 1), v(vQ + 1)])
        e.ins(f"v_dot2_f32_bf16 v{a1}, v{kk+1}, v{vQ+3}, v{a1}", 'dot', wr=v(a1), rd=[v(kk + 1), v(vQ + 3), v(a1)], ab=[v(kk + 1), v(vQ + 3)])

    def perm(op, a, b):
        e.ins(f"{op} v{a}, v{b}", 'perm', wr=[v(a), v(b)], rd=[v(a), v(b)])

    def dpp(op, d, s0, s1, ctl):
        e.ins(f"{op}_dpp v{d}, v{s0}, v{s1} {ctl}", 'dpp', wr=v(d), rd=[v(s0), v(s1), v(d)])

    def k_reduce(lds_off):
        for j in range(8):
            perm("v_permlane32_swap_b32", vB + 2 * j, vB + 2 * j + 1)
        for j in range(8):
            e.valu("v_add_f32", v(vB + 2 * j), v(vB + 2 * j), v(vB + 2 * j + 1))
        for j in range(4):
            perm("v_permlane16_swap_b32", vB + 4 * j, vB + 4 * j + 2)
        for j in range(4):
            e.valu("v_add_f32", v(vB + 4 * j), v(vB + 4 * j), v(vB + 4 * j + 2))
        for j in range(2):
            X, Y = vB + 8 * j, vB + 8 * j + 4
            dpp("v_add_f32", X, X, X, "row_ror:8 row_mask:0xf bank_mask:0x3")
            dpp("v_add_f32", X, Y, Y, "row_ror:8 row_mask:0xf bank_mask:0xc")
        X, Y = vB, vB + 8
        dpp("v_add_f32", X, X, X, "row_shl:4 row_mask:0xf bank_mask:0x5")
        dpp("v_add_f32", X, Y, Y, "row_shr:4 row_mask:0xf bank_mask:0xa")
        dpp("v_add_f32", X, X, X, "quad_perm:[1,0,3,2] row_mask:0xf bank_mask:0xf")
        dpp("v_add_f32", X, X, X, "quad_perm:[2,3,0,1] row_mask:0xf bank_mask:0xf")
        e.ins(f"ds_write_b32 v{vLA}, v{X} offset:{lds_off}", 'ds', rd=[v(vLA), v(X)])

    def k_iter(srd_next, tail=False):
        e.wait(vm=D)
        unpack_scales()
        if not tail:
            load_scales()
        for i in range(D):
            def fn(i=i):
                load_row(i, srd_next, (i % 4) * 1024)
                if i % 4 == 3:
                    e.salu(f"s_add_u32 s{sPRE}, s{sPRE}, {JUMP}", wr=f"s{sPRE}")
            k_row(i, i % 8, {'cnt': D - 1 + (0 if tail else 2), 'fn': fn})
            if i % 8 == 7:
                k_reduce((i // 8) * 32)

    if NITER > 1:
        e.salu(f"s_mov_b32 s{sLOOP}, {NITER-1}")
        e.fence(4)
        e.label("L_kloop")
        k_iter(S_K)
        e.valu("v_add_u32", v(vLA), D * 4, v(vLA))
        e.salu(f"s_sub_u32 s{sLOOP}, s{sLOOP}, 1")
        e.salu(f"s_cmp_lg_u32 s{sLOOP}, 0")
        e.fence(4)
        e.ins("s_cbranch_scc1 L_kloop", 'other')
    e.salu(f"s_lshl_b32 s{sPRE}, s{sROW}, 10", wr=f"s{sPRE}")
    k_iter(S_V, tail=True)

    e.salu(f"s_mul_i32 s{sTMP}, s{sWAVE}, {WREG}")
    e.valu("v_lshlrev_b32", v(vX), int(math.log2(NT * 4)), v(vLANE))
    e.valu("v_add_u32", v(vX), f"s{sTMP}", v(vX))
    e.wait(lgkm=0)
    rdop = {1: "ds_read_b32", 2: "ds_read_b64", 4: "ds_read_b128"}[NT]
    e.ins(f"{rdop} {vr(vT,NT) if NT>1 else v(vT)}, v{vX}", 'ds', wr=vr(vT, NT), rd=v(vX))
    e.wait(lgkm=0)
    for i in range(NT):
        e.valu("v_cvt_pk_bf16_f32", v(vT + i), 0, v(vT + i))
    e.valu("v_mov_b32", v(vM), v(vT))
    for i in range(1, NT):
        e.valu("v_max_f32", v(vM), v(vM), v(vT + i))

    def allreduce32(op, reg, tmp):
        dpp(op, reg, reg, reg, "quad_perm:[1,0,3,2] row_mask:0xf bank_mask:0xf")
        dpp(op, reg, reg, reg, "quad_perm:[2,3,0,1] row_mask:0xf bank_mask:0xf")
        dpp(op, reg, reg, reg, "row_ror:4 row_mask:0xf bank_mask:0xf")
        dpp(op, reg, reg, reg, "row_ror:8 row_mask:0xf bank_mask:0xf")
        e.valu("v_mov_b32", v(tmp), v(reg))
        perm("v_permlane16_swap_b32", reg, tmp)
        e.valu(op, v(reg), v(reg), v(tmp))

    allreduce32("v_max_f32", vM, vX + 1)
    for i in range(NT):
        e.valu("v_sub_f32", v(vT + i), v(vT + i), v(vM))
    for i in range(NT):
        e.valu("v_mul_f32", v(vT + i), f"s{sCEXP}", v(vT + i))
    for i in range(NT):
        e.valu("v_exp_f32", v(vT + i), v(vT + i), kind='trans')
    e.valu("v_mov_b32", v(vL), v(vT))
    for i in range(1, NT):
        e.valu("v_add_f32", v(vL), v(vL), v(vT + i))
    allreduce32("v_add_f32", vL, vX + 1)
    e.valu("v_lshlrev_b32", v(vX), int(math.log2(NT * 2)), v(vLANE))
    e.valu("v_add_u32", v(vX), f"s{sTMP}", v(vX))
    if NT == 1:
        e.valu("v_cvt_pk_bf16_f32", v(vT + 4), v(vT), v(vT))
        e.ins(f"ds_write_b16 v{vX}, v{vT+4} offset:{P_OFF}", 'ds', rd=[v(vX), v(vT + 4)])
    elif NT == 2:
        e.valu("v_cvt_pk_bf16_f32", v(vT + 4), v(vT), v(vT + 1))
        e.ins(f"ds_write_b32 v{vX}, v{vT+4} offset:{P_OFF}", 'ds', rd=[v(vX), v(vT + 4)])
    else:
        e.valu("v_cvt_pk_bf16_f32", v(vT + 4), v(vT), v(vT + 1))
        e.valu("v_cvt_pk_bf16_f32", v(vT + 5), v(vT + 2), v(vT + 3))
        e.ins(f"ds_write_b64 v{vX}, {vr(vT+4,2)} offset:{P_OFF}", 'ds', rd=[v(vX), vr(vT + 4, 2)])
    e.wait(lgkm=0)

    e.salu(f"s_mov_b32 s{sLANE}, 0", wr=f"s{sLANE}")

    def v_iter(last):
        for i in range(D):
            j = i % 8
            r = R(i)
            t = vT + 4 * (j % 2)
            if j == 0:
                e.ins(f"ds_read_b128 {vr(vA,4)}, v{vAA} offset:{(i//8)*16}", 'ds', wr=vr(vA, 4), rd=v(vAA))
            if j % 2 == 0:
                e.ins(f"v_readlane_b32 s{sRA}, v{vZ}, s{sLANE}", 'readlane', wr=f"s{sRA}", rd=[v(vZ), f"s{sLANE}"], lanesel=f"s{sLANE}")
                e.ins(f"v_readlane_b32 s{sRB}, v{vS}, s{sLANE}", 'readlane', wr=f"s{sRB}", rd=[v(vS), f"s{sLANE}"], lanesel=f"s{sLANE}")
                e.salu(f"s_add_u32 s{sLANE}, s{sLANE}, 1", wr=f"s{sLANE}")
                e.nop(1)
                e.salu(f"s_lshl_b32 s{sZ0}, s{sRA}, 16", wr=f"s{sZ0}")
                e.salu(f"s_and_b32 s{sZ1}, s{sRA}, 0xffff0000", wr=f"s{sZ1}")
                e.salu(f"s_lshl_b32 s{sS0}, s{sRB}, 16", wr=f"s{sS0}")
                e.salu(f"s_and_b32 s{sS1}, s{sRB}, 0xffff0000", wr=f"s{sS1}")
            sz = sZ0 if j % 2 == 0 else sZ1
            ss = sS0 if j % 2 == 0 else sS1
            e.wait(vm=(D - 1 - i) if last else (D - 1))
            for c in range(4):
                e.valu("v_cvt_f32_i32", v(t + c), v(r + c))
            if not last:
                load_row(i, S_V, (i % 4) * 1024)
                if i % 4 == 3:
                    e.salu(f"s_add_u32 s{sPRE}, s{sPRE}, {JUMP}", wr=f"s{sPRE}")
            if nocompute:
                e.valu("v_add_f32", v(vACC), v(t), v(vACC))
                e.valu("v_add_f32", v(vACC + 1), v(t + 1), v(vACC + 1))
                e.valu("v_add_f32", v(vACC + 2), v(t + 2), v(vACC + 2))
                e.valu("v_add_f32", v(vACC + 3), v(t + 3), v(vACC + 3))
                continue
            if exact_int:
                for c in range(4):
                    e.valu("v_cvt_pk_bf16_f32", v(t + c), 0, v(t + c))
            for c in range(4):
                e.valu("v_subrev_f32", v(t + c), f"s{sz}", v(t + c))
            for c in range(4):
                e.valu("v_cvt_pk_bf16_f32", v(t + c), 0, v(t + c))
            for c in range(4):
                e.valu("v_mul_f32", v(t + c), f"s{ss}", v(t + c))
            if j % 2 == 1:
                for c in range(4):
                    e.valu("v_cvt_pk_bf16_f32", v(vB + 4 * c + j // 2), v(vT + c), v(vT + 4 + c))
            if j == 7:
                e.wait(lgkm=0)
                for c in range(4):
                    acc = vr(vACC + 4 * c, 4)
                    e.ins(f"v_mfma_f32_16x16x32_bf16 {acc}, {vr(vA,4)}, {vr(vB+4*c,4)}, {acc}", 'mfma',
                          wr=acc, rd=[vr(vA, 4), vr(vB + 4 * c, 4), acc], ab=[vr(vA, 4), vr(vB + 4 * c, 4)], c=acc)

    if NITER > 1:
        e.salu(f"s_mov_b32 s{sLOOP}, {NITER-1}")
        e.fence(4)
        e.label("L_vloop")
        v_iter(False)
        e.valu("v_add_u32", v(vAA), D * 2, v(vAA))
        e.salu(f"s_sub_u32 s{sLOOP}, s{sLOOP}, 1")
        e.salu(f"s_cmp_lg_u32 s{sLOOP}, 0")
        e.fence(4)
        e.ins("s_cbranch_scc1 L_vloop", 'other')
    v_iter(True)
    e.fence(10)

    e.valu("v_lshrrev_b32", v(vT), 4, v(vLANE))
    e.valu("v_lshlrev_b32", v(vT), 9, v(vT))
    e.valu("v_and_b32", v(vT + 1), 15, v(vLANE))
    e.valu("v_lshl_add_u32", v(vT), v(vT + 1), 4, v(vT))
    e.valu("v_add_u32", v(vT), f"s{sTMP}", v(vT))
    e.valu("v_lshrrev_b32", v(vT + 1), 5, v(vLANE))
    e.valu("v_lshlrev_b32", v(vT + 1), 3, v(vT + 1))
    e.salu(f"s_lshl_b32 s{sTMP2}, s{sWAVE}, 4")
    e.valu("v_add_u32", v(vT + 1), f"s{sTMP2}", v(vT + 1))
    e.ins(f"ds_write_b64 v{vT+1}, {vr(vM,2)} offset:{ML_OFF}", 'ds', rd=[v(vT + 1), vr(vM, 2)])
    for u in range(2):
        for h in range(2):
            q = vB + 4 * (2 * u + h)
            for c in range(4):
                e.valu("v_mov_b32", v(q + c), v(vACC + 4 * c + 2 * u + h))
    e.salu("s_mov_b32 exec_hi, 0")
    for u in range(2):
        for h in range(2):
            q = vB + 4 * (2 * u + h)
            e.ins(f"ds_write_b128 v{vT}, {vr(q,4)} offset:{h*1024+u*256}", 'ds', rd=[v(vT), vr(q, 4)])
    e.salu("s_mov_b64 exec, -1")
    e.wait(lgkm=0)
    e.ins("s_barrier", 'other')
    e.salu(f"s_cmp_lg_u32 s{sWAVE}, 0")
    e.ins("s_cbranch_scc1 L_part_end", 'other')
    e.valu("v_lshlrev_b32", v(vX), 5, v(vLANE))
    e.valu("v_lshrrev_b32", v(vT), 5, v(vLANE))
    e.valu("v_lshlrev_b32", v(vX + 1), 3, v(vT))
    mlb = vT
    assert 2 * NW <= 16
    ob = vRING
    assert 8 * NW <= 4 * D
    for w in range(NW):
        e.ins(f"ds_read_b64 {vr(mlb+2*w,2)}, v{vX+1} offset:{ML_OFF+16*w}", 'ds', wr=vr(mlb + 2 * w, 2), rd=v(vX + 1))
    for w in range(NW):
        e.ins(f"ds_read_b128 {vr(ob+8*w,4)}, v{vX} offset:{WREG*w}", 'ds', wr=vr(ob + 8 * w, 4), rd=v(vX))
        e.ins(f"ds_read_b128 {vr(ob+8*w+4,4)}, v{vX} offset:{WREG*w+16}", 'ds', wr=vr(ob + 8 * w + 4, 4), rd=v(vX))
    e.wait(lgkm=0)

    def combine(n, mlb, ob, acc):
        e.valu("v_mov_b32", v(vM), v(mlb))
        for w in range(1, n):
            e.valu("v_max_f32", v(vM), v(vM), v(mlb + 2 * w))
        for w in range(n):
            e.valu("v_sub_f32", v(mlb + 2 * w), v(mlb + 2 * w), v(vM))
        for w in range(n):
            e.valu("v_mul_f32", v(mlb + 2 * w), f"s{sCEXP}", v(mlb + 2 * w))
        for w in range(n):
            e.valu("v_exp_f32", v(mlb + 2 * w), v(mlb + 2 * w), kind='trans')
        e.valu("v_mul_f32", v(vL), v(mlb), v(mlb + 1))
        for c in range(8):
            e.valu("v_mul_f32", v(acc + c), v(mlb), v(ob + c))
        for w in range(1, n):
            e.valu("v_fmac_f32", v(vL), v(mlb + 2 * w), v(mlb + 2 * w + 1))
            for c in range(8):
                e.valu("v_fmac_f32", v(acc + c), v(mlb + 2 * w), v(ob + 8 * w + c))

    combine(NW, mlb, ob, vACC)
    sf = " sc1" if single else ""
    e.salu(f"s_lshl_b32 s{sTMP2}, s2, 11")
    e.ins(f"buffer_store_dwordx4 {vr(vACC,4)}, v{vX}, {sr(sWS,4)}, s{sTMP2} offen{sf}", 'vstore', rd=[vr(vACC, 4), v(vX)], data=vr(vACC, 4))
    e.ins(f"buffer_store_dwordx4 {vr(vACC+4,4)}, v{vX}, {sr(sWS,4)}, s{sTMP2} offen offset:16{sf}", 'vstore', rd=[vr(vACC + 4, 4), v(vX)], data=vr(vACC + 4, 4))
    e.salu(f"s_lshl_b32 s{sTMP2}, s2, 4")
    e.salu(f"s_add_u32 s{sTMP2}, s{sTMP2}, 0x400000")
    e.salu("s_mov_b32 exec_lo, 1")
    e.salu("s_mov_b32 exec_hi, 1")
    e.ins(f"buffer_store_dwordx2 {vr(vM,2)}, v{vX+1}, {sr(sWS,4)}, s{sTMP2} offen{sf}", 'vstore', rd=[vr(vM, 2), v(vX + 1)])
    if single:
        e.salu(f"s_mov_b32 s{S_T}, s20")
        e.salu(f"s_and_b32 s{S_T+1}, s21, 0xffff")
        e.salu(f"s_mov_b32 s{S_T+2}, 256")
        e.salu(f"s_mov_b32 s{S_T+3}, 0x00020000")
        e.salu(f"s_lshl_b32 s{sTMP2}, s{sBH}, 2")
        e.valu("v_mov_b32", v(vT), 1)
        e.valu("v_mov_b32", v(vT + 1), 0)
        e.salu("s_mov_b32 exec_hi, 0")
        e.wait(vm=0)
        e.ins(f"buffer_atomic_add v{vT}, v{vT+1}, {sr(S_T,4)}, s{sTMP2} offen sc0 sc1", 'vmem', wr=v(vT), rd=[v(vT), v(vT + 1)])
        e.wait(vm=0)
        e.ins(f"v_readfirstlane_b32 s{sTMP}, v{vT}", 'readlane', wr=f"s{sTMP}", rd=v(vT))
        e.salu("s_mov_b64 exec, -1")
        e.nop(2)
        e.salu(f"s_cmp_lg_u32 s{sTMP}, {NSPLIT-1}")
        e.ins("s_cbranch_scc1 L_part_end", 'other')
        assert NSPLIT <= 8
        e.salu(f"s_mul_i32 s{sTMP}, s{sBH}, {NSPLIT*2048}")
        e.salu(f"s_mul_i32 s{sTMP2}, s{sBH}, {NSPLIT*16}")
        e.salu(f"s_add_u32 s{sTMP2}, s{sTMP2}, 0x400000")
        for sp in range(NSPLIT):
            e.ins(f"buffer_load_dwordx2 {vr(mlb+2*sp,2)}, v{vX+1}, {sr(sWS,4)}, s{sTMP2} offen offset:{16*sp} sc1", 'vmem', wr=vr(mlb + 2 * sp, 2), rd=v(vX + 1))
        for sp in range(NSPLIT):
            e.ins(f"buffer_load_dwordx4 {vr(ob+8*sp,4)}, v{vX}, {sr(sWS,4)}, s{sTMP} offen offset:{(sp%2)*2048} sc1", 'vmem', wr=vr(ob + 8 * sp, 4), rd=v(vX))
            e.ins(f"buffer_load_dwordx4 {vr(ob+8*sp+4,4)}, v{vX}, {sr(sWS,4)}, s{sTMP} offen offset:{(sp%2)*2048+16} sc1", 'vmem', wr=vr(ob + 8 * sp + 4, 4), rd=v(vX))
            if sp % 2 == 1:
                e.salu(f"s_add_u32 s{sTMP}, s{sTMP}, 4096")
        e.salu(f"s_mov_b32 s{S_T}, s18")
        e.salu(f"s_and_b32 s{S_T+1}, s19, 0xffff")
        e.salu(f"s_mov_b32 s{S_T+2}, {8*16*256*2}")
        e.salu(f"s_mov_b32 s{S_T+3}, 0x00020000")
        e.salu(f"s_lshl_b32 s{sTMP2}, s{sBH}, 10")
        e.valu("v_lshlrev_b32", v(vX + 1), 4, v(vLANE))
        e.wait(vm=0)
        combine(NSPLIT, mlb, ob, vACC)
        e.valu("v_rcp_f32", v(vL), v(vL), kind='trans')
        for c in range(8):
            e.valu("v_mul_f32", v(vACC + c), v(vACC + c), v(vL))
        for c in range(4):
            e.valu("v_cvt_pk_bf16_f32", v(vB + c), v(vACC + 2 * c), v(vACC + 2 * c + 1))
        e.ins(f"buffer_store_dwordx4 {vr(vB,4)}, v{vX+1}, {sr(S_T,4)}, s{sTMP2} offen", 'vstore', rd=[vr(vB, 4), v(vX + 1)], data=vr(vB, 4))
    e.label("L_part_end")
    e.ins("s_endpgm", 'other')

    main_lines = list(e.lines)
    k2 = "attn_comb_kernel"
    e.raw("")
    e.raw(f".globl {k2}")
    e.raw(".p2align 8")
    e.raw(f".type {k2},@function")
    e.label(k2)
    e.hist = []
    e.salu("s_cmp_ge_u32 s2, 64")
    e.ins("s_cbranch_scc1 L_comb_end", 'other')
    e.salu("s_load_dwordx2 s[4:5], s[0:1], 56")
    e.salu("s_load_dwordx2 s[6:7], s[0:1], 72")
    e.valu("v_lshrrev_b32", "v1", 8, "v0")
    e.valu("v_lshlrev_b32", "v1", 3, "v1")
    e.valu("v_lshlrev_b32", "v2", 2, "v0")
    e.valu("v_lshlrev_b32", "v3", 1, "v0")
    e.salu(f"s_mov_b32 s20, {cexp_hex}")
    e.wait(lgkm=0)
    e.salu("s_mov_b32 s8, s6")
    e.salu("s_and_b32 s9, s7, 0xffff")
    e.salu("s_mov_b32 s10, 0x40000000")
    e.salu("s_mov_b32 s11, 0x00020000")
    e.salu("s_mov_b32 s12, s4")
    e.salu("s_and_b32 s13, s5, 0xffff")
    e.salu(f"s_mov_b32 s14, {8*16*256*2}")
    e.salu("s_mov_b32 s15, 0x00020000")
    e.salu(f"s_mul_i32 s16, s2, {NSPLIT*2048}")
    e.salu(f"s_mul_i32 s17, s2, {NSPLIT*16}")
    e.salu("s_add_u32 s17, s17, 0x400000")
    CH = min(NSPLIT, 16)
    nch = NSPLIT // CH
    e.valu("v_mov_b32", "v4", "0xff800000")
    e.valu("v_mov_b32", "v5", 0)
    e.valu("v_mov_b32", "v6", 0)
    for ch in range(nch):
        for s in range(CH):
            e.ins(f"buffer_load_dwordx2 v[{10+2*s}:{11+2*s}], v1, s[8:11], s17 offen offset:{16*s}", 'vmem', wr=f"v[{10+2*s}:{11+2*s}]", rd='v1')
        for s in range(CH):
            e.ins(f"buffer_load_dword v{50+s}, v2, s[8:11], s16 offen offset:{(s%2)*2048}", 'vmem', wr=f"v{50+s}", rd='v2')
            if s % 2 == 1:
                e.salu("s_add_u32 s16, s16, 4096")
        if CH == 1:
            e.salu("s_add_u32 s16, s16, 2048")
        e.salu(f"s_add_u32 s17, s17, {16*CH}")
        e.wait(vm=0)
        e.valu("v_mov_b32", "v7", "v4")
        for s in range(CH):
            e.valu("v_max_f32", "v7", "v7", f"v{10+2*s}")
        e.valu("v_sub_f32", "v8", "v4", "v7")
        e.valu("v_mul_f32", "v8", "s20", "v8")
        e.valu("v_exp_f32", "v8", "v8", kind='trans')
        e.valu("v_mul_f32", "v5", "v5", "v8")
        e.valu("v_mul_f32", "v6", "v6", "v8")
        e.valu("v_mov_b32", "v4", "v7")
        for s in range(CH):
            e.valu("v_sub_f32", f"v{10+2*s}", f"v{10+2*s}", "v7")
        for s in range(CH):
            e.valu("v_mul_f32", f"v{10+2*s}", "s20", f"v{10+2*s}")
        for s in range(CH):
            e.valu("v_exp_f32", f"v{10+2*s}", f"v{10+2*s}", kind='trans')
        for s in range(CH):
            e.valu("v_fmac_f32", "v5", f"v{10+2*s}", f"v{11+2*s}")
            e.valu("v_fmac_f32", "v6", f"v{10+2*s}", f"v{50+s}")
    e.valu("v_rcp_f32", "v8", "v5", kind='trans')
    e.valu("v_mul_f32", "v6", "v6", "v8")
    e.valu("v_cvt_pk_bf16_f32", "v6", "v6", "v6")
    e.salu("s_lshl_b32 s16, s2, 10")
    e.ins("buffer_store_short v6, v3, s[12:15], s16 offen", 'vstore', rd=['v6', 'v3'])
    e.label("L_comb_end")
    e.ins("s_endpgm", 'other')

    nv_alloc = ((NV + 7) // 8) * 8
    hdr = open("cdna_kernels/" + NAME + ".s.ref").read().split("; @launch")[0]
    out = hdr
    if single:
        out += f"; @launch grid=({NWG},1,1) block=({NW*64},1,1) lds={LDS}\n"
        e.lines = main_lines
    else:
        out += f"; @launch kernel=attn_part_kernel grid=({NWG},1,1) block=({NW*64},1,1) lds={LDS}\n"
        out += f"; @launch kernel=attn_comb_kernel grid=(64,1,1) block=(512,1,1) lds=0\n"
    out += f"; params: NW={NW} TPW={TPW} D={D} flags={flags} exact_int={exact_int}\n"
    out += '.amdgcn_target "amdgcn-amd-amdhsa--gfx950"\n.text\n'
    out += "\n".join(e.lines) + "\n"
    out += '.section .rodata,"a"\n'
    for (k, nv, ns) in ((kname, nv_alloc, 72),) + (() if single else ((k2, 72, 32),)):
        out += f""".p2align 6
.amdhsa_kernel {k}
  .amdhsa_next_free_vgpr {nv}
  .amdhsa_next_free_sgpr {ns}
  .amdhsa_accum_offset {nv}
  .amdhsa_group_segment_fixed_size 0
  .amdhsa_kernarg_size 80
  .amdhsa_user_sgpr_count 2
  .amdhsa_user_sgpr_kernarg_segment_ptr 1
  .amdhsa_system_sgpr_workgroup_id_x 1
  .amdhsa_float_denorm_mode_32 3
.end_amdhsa_kernel
"""
    return out


if __name__ == "__main__":
    ap = argparse.ArgumentParser()
    ap.add_argument("--nw", type=int, default=8)
    ap.add_argument("--tpw", type=int, default=128)
    ap.add_argument("--d", type=int, default=16)
    ap.add_argument("--flags", default="nt")
    ap.add_argument("--noexact", action="store_true")
    ap.add_argument("--nocompute", action="store_true")
    ap.add_argument("--two", action="store_true")
    ap.add_argument("-o", default="cdna_kernels/" + NAME + ".s")
    a = ap.parse_args()
    s = gen(a.nw, a.tpw, a.d, a.flags, not a.noexact, a.nocompute, not a.two)
    open(a.o, "w").write(s)
```

```python
import sys, argparse, math, struct
from gen import Em, regs, NAME


class Em2(Em):
    def __init__(self):
        super().__init__()
        self.vq = []

    def vissue(self, tag):
        self.vq.append(tag)

    def vwait(self, tag):
        idx = max(i for i, t in enumerate(self.vq) if t == tag)
        n = len(self.vq) - 1 - idx
        assert n <= 63
        self.wait(vm=n)
        self.vq = self.vq[idx + 1:]

    def vwait_all(self):
        self.wait(vm=0)
        self.vq = []


def gen(D=16, flags="nt", exact_int=True, pk=True, stamp=False, early=True):
    NW, TPW, CHK = 8, 128, 4
    RPG = 128 // NW
    KD = D // RPG
    assert D in (16, 32)
    JUMP = NW * CHK * 1024
    TPG = NW * TPW
    NSPLIT = 4096 // TPG
    NWG = 64 * NSPLIT
    NG = TPW // RPG
    NITER = TPW // D
    WREG = 2048
    LDS = NW * WREG + NW * 16
    ML_OFF = NW * WREG
    NT = 4
    P_OFF, Z_OFF = 1024, 1536
    C_EXP = 0.0625 * 1.4426950408889634
    cexp_hex = "0x%08x" % struct.unpack('<I', struct.pack('<f', C_EXP))[0]

    S_K, S_V, S_T = 24, 28, 32
    sBH, sSPLIT, sWAVE, sROW, sTMP, sTMP2, sLOOP, sLANE = 36, 37, 38, 39, 40, 41, 42, 43
    sZ, sS = 44, 46
    sRA, sRB = 48, 49
    sCEXP, sPRE = 50, 51
    sWS = 52
    sWGROW, sSCO = 58, 59
    S_KS, S_KZ = 60, 64
    vTID, vOFF, vLANE, vZ, vS, vLA, vAA, vL8 = 0, 1, 2, 3, 4, 5, 6, 7
    vT = 8
    vKZ, vKS, vQ = 24, 28, 32
    vM, vL, vX = 36, 37, 38
    vA = 40
    vB = 44
    vACC = 60
    vSC1 = 76
    vRING = 80
    NV = vRING + 4 * D

    e = Em2()
    R = lambda i: vRING + 4 * (i % D)
    v = lambda i: f"v{i}"
    vr = lambda a, n: f"v[{a}:{a+n-1}]"
    sr = lambda a, n: f"s[{a}:{a+n-1}]"
    SCB = [vA, vSC1]

    kname = NAME + "_kernel"
    e.raw(f".globl {kname}")
    e.raw(".p2align 8")
    e.raw(f".type {kname},@function")
    e.label(kname)
    e.salu(f"s_cmp_ge_u32 s2, {NWG}", rd='s2')
    e.ins("s_cbranch_scc1 L_part_end", 'other')
    if stamp:
        e.salu("s_memrealtime s[68:69]")
    e.salu("s_load_dwordx16 s[4:19], s[0:1], 0", wr='s[4:19]')
    e.salu("s_load_dwordx4 s[20:23], s[0:1], 64", wr='s[20:23]')
    e.valu("v_and_b32", v(vLANE), 63, v(vTID))
    e.valu("v_lshrrev_b32", v(vX), 6, v(vTID))
    e.valu("v_lshlrev_b32", v(vOFF), 4, v(vLANE))
    e.ins(f"v_readfirstlane_b32 s{sWAVE}, v{vX}", 'readlane', wr=f"s{sWAVE}", rd=v(vX))
    e.valu("v_lshlrev_b32", v(vL8), 3, v(vLANE))
    e.salu(f"s_lshr_b32 s{sBH}, s2, 2", wr=f"s{sBH}")
    e.salu(f"s_lshl_b32 s{sWGROW}, s2, 10")
    e.salu(f"s_mov_b32 s{S_K+2}, 0x10000000")
    e.salu(f"s_mov_b32 s{S_K+3}, 0x00020000")
    e.salu(f"s_lshl_b32 s{sTMP2}, s{sWAVE}, 2")
    e.salu(f"s_add_u32 s{sROW}, s{sWGROW}, s{sTMP2}")
    e.salu(f"s_lshl_b32 s{sPRE}, s{sROW}, 10")
    e.salu(f"s_lshl_b32 s{sSCO}, s2, 12")
    e.salu(f"s_mov_b32 s{S_KS+2}, {8 * 8 * 32 * 256 * 2}")
    e.salu(f"s_mov_b32 s{S_KS+3}, 0x00020000")
    e.salu(f"s_mov_b32 s{S_KZ+2}, {8 * 8 * 32 * 256 * 2}")
    e.salu(f"s_mov_b32 s{S_KZ+3}, 0x00020000")
    e.wait(lgkm=0)
    e.salu(f"s_mov_b32 s{S_K}, s6")
    e.salu(f"s_and_b32 s{S_K+1}, s7, 0xffff")
    e.salu(f"s_mov_b32 s{S_KS}, s10")
    e.salu(f"s_and_b32 s{S_KS+1}, s11, 0xffff")
    e.salu(f"s_mov_b32 s{S_KZ}, s12")
    e.salu(f"s_and_b32 s{S_KZ+1}, s13, 0xffff")

    fl = (" " + flags) if flags else ""

    def load_row(i, srd):
        e.ins(f"buffer_load_dwordx4 {vr(R(i),4)}, v{vOFF}, {sr(srd,4)}, s{sPRE} offen offset:{(i%4)*1024}{fl}",
              'vmem', wr=vr(R(i), 4), rd=[v(vOFF), sr(srd, 4), f"s{sPRE}"])
        e.vissue(('R', i % D))
        if i % 4 == 3:
            e.salu(f"s_add_u32 s{sPRE}, s{sPRE}, {JUMP}", wr=f"s{sPRE}")

    def load_scales(b):
        e.ins(f"buffer_load_dwordx2 {vr(SCB[b],2)}, v{vL8}, {sr(S_KS,4)}, s{sSCO} offen", 'vmem', wr=vr(SCB[b], 2), rd=v(vL8))
        e.vissue(('s', b))
        e.ins(f"buffer_load_dwordx2 {vr(SCB[b]+2,2)}, v{vL8}, {sr(S_KZ,4)}, s{sSCO} offen", 'vmem', wr=vr(SCB[b] + 2, 2), rd=v(vL8))
        e.vissue(('S', b))
        e.salu(f"s_add_u32 s{sSCO}, s{sSCO}, 512", wr=f"s{sSCO}")

    def unpack_scales(b):
        for (d, src) in ((vKS, SCB[b]), (vKZ, SCB[b] + 2)):
            e.valu("v_lshlrev_b32", v(d), 16, v(src))
            e.valu("v_and_b32", v(d + 1), "0xffff0000", v(src))
            e.valu("v_lshlrev_b32", v(d + 2), 16, v(src + 1))
            e.valu("v_and_b32", v(d + 3), "0xffff0000", v(src + 1))

    def small_srd(p, nbytes):
        e.salu(f"s_mov_b32 s{S_T}, s{p}")
        e.salu(f"s_and_b32 s{S_T+1}, s{p+1}, 0xffff")
        e.salu(f"s_mov_b32 s{S_T+2}, {nbytes}")
        e.salu(f"s_mov_b32 s{S_T+3}, 0x00020000")

    def small_loads():
        small_srd(4, 8 * 16 * 256 * 2)
        e.salu(f"s_lshl_b32 s{sTMP2}, s{sBH}, 10")
        e.ins(f"buffer_load_dwordx2 {vr(vQ,2)}, v{vL8}, {sr(S_T,4)}, s{sTMP2} offen", 'vmem', wr=vr(vQ, 2), rd=v(vL8))
        e.vissue('q0')
        e.ins(f"buffer_load_dwordx2 {vr(vQ+2,2)}, v{vL8}, {sr(S_T,4)}, s{sTMP2} offen offset:512", 'vmem', wr=vr(vQ + 2, 2), rd=v(vL8))
        e.vissue('q')

    def vscale_loads():
        e.valu("v_lshrrev_b32", v(vT), 1, v(vLANE))
        e.valu("v_mul_u32_u24", v(vT), NW * CHK * 2, v(vT))
        e.valu("v_and_b32", v(vT + 1), 1, v(vLANE))
        e.valu("v_lshl_add_u32", v(vT), v(vT + 1), 2, v(vT))
        e.salu(f"s_lshl_b32 s{sTMP2}, s{sROW}, 1")
        small_srd(14, 8 * 8 * 4096 * 2)
        e.ins(f"buffer_load_dword v{vS}, v{vT}, {sr(S_T,4)}, s{sTMP2} offen", 'vmem', wr=v(vS), rd=v(vT))
        e.vissue('vs')
        small_srd(16, 8 * 8 * 4096 * 2)
        e.ins(f"buffer_load_dword v{vZ}, v{vT}, {sr(S_T,4)}, s{sTMP2} offen", 'vmem', wr=v(vZ), rd=v(vT))
        e.vissue('vz')

    small_loads()
    for g in range(KD):
        load_scales(g % 2)
        for i in range(RPG):
            load_row(g * RPG + i, S_K)
    vq_entry = None

    e.salu(f"s_mov_b32 s{S_V}, s8")
    e.salu(f"s_and_b32 s{S_V+1}, s9, 0xffff")
    e.salu(f"s_mov_b32 s{S_V+2}, 0x10000000")
    e.salu(f"s_mov_b32 s{S_V+3}, 0x00020000")
    e.salu(f"s_mov_b32 s{sWS}, s22")
    e.salu(f"s_and_b32 s{sWS+1}, s23, 0xffff")
    e.salu(f"s_mov_b32 s{sWS+2}, 0x40000000")
    e.salu(f"s_mov_b32 s{sWS+3}, 0x00020000")
    e.salu(f"s_mov_b32 s{sCEXP}, {cexp_hex}")

    e.salu(f"s_lshl_b32 s{sTMP}, s{sWAVE}, 11")
    e.valu("v_lshrrev_b32", v(vT), 5, v(vLANE))
    e.valu("v_lshlrev_b32", v(vLA), 9, v(vT))
    e.valu("v_bfe_u32", v(vT), v(vLANE), 4, 1)
    e.valu("v_lshl_add_u32", v(vLA), v(vT), 2, v(vLA))
    e.valu("v_bfe_u32", v(vT), v(vLANE), 3, 1)
    e.valu("v_lshl_add_u32", v(vLA), v(vT), 3, v(vLA))
    e.valu("v_bfe_u32", v(vT), v(vLANE), 2, 1)
    e.valu("v_lshl_add_u32", v(vLA), v(vT), 4, v(vLA))
    e.valu("v_add_u32", v(vLA), f"s{sTMP}", v(vLA))
    e.valu("v_and_b32", v(vT), 15, v(vLANE))
    e.valu("v_lshrrev_b32", v(vT + 1), 1, v(vT))
    e.valu("v_lshrrev_b32", v(vT + 2), 4, v(vLANE))
    e.ins(f"v_cmp_eq_u32 vcc, v{vT+1}, v{vT+2}", 'valu', wr='vcc', rd=[v(vT + 1), v(vT + 2)])
    e.valu("v_and_b32", v(vT + 3), 1, v(vLANE))
    e.valu("v_lshlrev_b32", v(vT + 3), 8, v(vT + 3))
    e.valu("v_add_u32", v(vT + 3), P_OFF, v(vT + 3))
    e.valu("v_mov_b32", v(vT + 4), Z_OFF)
    e.ins(f"v_cndmask_b32 v{vAA}, v{vT+4}, v{vT+3}, vcc", 'valu', wr=v(vAA), rd=[v(vT + 4), v(vT + 3), 'vcc'])
    e.valu("v_add_u32", v(vAA), f"s{sTMP}", v(vAA))
    e.valu("v_lshlrev_b32", v(vT), 2, v(vLANE))
    e.valu("v_add_u32", v(vT), f"s{sTMP}", v(vT))
    e.valu("v_mov_b32", v(vT + 1), 0)
    e.ins(f"ds_write_b32 v{vT}, v{vT+1} offset:{Z_OFF}", 'ds', rd=[v(vT), v(vT + 1)])
    for i in range(16):
        e.valu("v_mov_b32", v(vACC + i), 0)

    def perm(op, a, b):
        e.ins(f"{op} v{a}, v{b}", 'perm', wr=[v(a), v(b)], rd=[v(a), v(b)])

    def dpp(op, d, s0, s1, ctl):
        e.ins(f"{op}_dpp v{d}, v{s0}, v{s1} {ctl}", 'dpp', wr=v(d), rd=[v(s0)])

    def pkop(op, d, a, b, mods=""):
        e.ins(f"{op} {vr(d,2)}, {vr(a,2)}, {b} {mods}".rstrip(), 'valu', wr=vr(d, 2), rd=[vr(a, 2), b])

    def k_row(i, j, srd_next):
        r = R(i)
        t = vT + 4 * (j % 2)
        kk = vT + 8 + 2 * (j % 2)
        a0, a1 = vB + 2 * j, vB + 2 * j + 1
        e.vwait(('R', i % D))
        for c in range(4):
            e.valu("v_cvt_f32_i32", v(t + c), v(r + c))
        load_row(i, srd_next)
        if exact_int:
            for c in range(4):
                e.valu("v_cvt_pk_bf16_f32", v(t + c), 0, v(t + c))
        if pk:
            for c in (0, 2):
                pkop("v_pk_add_f32", t + c, t + c, vr(vKZ + c, 2), "neg_lo:[0,1] neg_hi:[0,1]")
        else:
            for c in range(4):
                e.valu("v_sub_f32", v(t + c), v(t + c), v(vKZ + c))
        for c in range(4):
            e.valu("v_cvt_pk_bf16_f32", v(t + c), 0, v(t + c))
        if pk:
            for c in (0, 2):
                pkop("v_pk_mul_f32", t + c, t + c, vr(vKS + c, 2))
        else:
            for c in range(4):
                e.valu("v_mul_f32", v(t + c), v(t + c), v(vKS + c))
        e.valu("v_cvt_pk_bf16_f32", v(kk), v(t), v(t + 1))
        e.valu("v_cvt_pk_bf16_f32", v(kk + 1), v(t + 2), v(t + 3))
        for (acc, k_, q_, first) in ((a0, kk, vQ, True), (a1, kk, vQ + 2, True), (a0, kk + 1, vQ + 1, False), (a1, kk + 1, vQ + 3, False)):
            c_ = "0" if first else v(acc)
            e.ins(f"v_dot2_f32_bf16 v{acc}, v{k_}, v{q_}, {c_}", 'dot', wr=v(acc),
                  rd=[v(k_), v(q_)] + ([] if first else [v(acc)]), ab=[v(k_), v(q_)])

    def k_reduce(lds_off):
        for j in range(8):
            perm("v_permlane32_swap_b32", vB + 2 * j, vB + 2 * j + 1)
        for j in range(8):
            e.valu("v_add_f32", v(vB + 2 * j), v(vB + 2 * j), v(vB + 2 * j + 1))
        for j in range(4):
            perm("v_permlane16_swap_b32", vB + 4 * j, vB + 4 * j + 2)
        for j in range(4):
            e.valu("v_add_f32", v(vB + 4 * j), v(vB + 4 * j), v(vB + 4 * j + 2))
        for j in range(2):
            X, Y = vB + 8 * j, vB + 8 * j + 4
            dpp("v_add_f32", X, X, X, "row_ror:8 row_mask:0xf bank_mask:0x3")
            dpp("v_add_f32", X, Y, Y, "row_ror:8 row_mask:0xf bank_mask:0xc")
        X, Y = vB, vB + 8
        dpp("v_add_f32", X, X, X, "row_shl:4 row_mask:0xf bank_mask:0x5")
        dpp("v_add_f32", X, Y, Y, "row_shr:4 row_mask:0xf bank_mask:0xa")
        dpp("v_add_f32", X, X, X, "quad_perm:[1,0,3,2] row_mask:0xf bank_mask:0xf")
        dpp("v_add_f32", X, X, X, "quad_perm:[2,3,0,1] row_mask:0xf bank_mask:0xf")
        e.ins(f"ds_write_b32 v{vLA}, v{X} offset:{lds_off}", 'ds', rd=[v(vLA), v(X)])

    def k_iter(tail):
        for g in range(KD):
            b = g % 2
            e.vwait(('S', b))
            unpack_scales(b)
            if not tail:
                load_scales(b)
            elif g == 0:
                vscale_loads()
            for ii in range(RPG):
                i = g * RPG + ii
                k_row(i, i % 8, S_V if tail else S_K)
                if i % 8 == 7:
                    k_reduce((i // 8) * 32)

    e.salu(f"s_mov_b32 s{sLOOP}, {NITER-1}")
    e.fence(4)
    e.label("L_kloop")
    q0 = [t for t in e.vq if t not in ('q0', 'q')]
    k_iter(False)
    assert e.vq == q0[len(q0) - len(e.vq):] or e.vq == q0, (e.vq, q0)
    e.vq = list(q0)
    e.valu("v_add_u32", v(vLA), D * 4, v(vLA))
    e.salu(f"s_sub_u32 s{sLOOP}, s{sLOOP}, 1")
    e.salu(f"s_cmp_lg_u32 s{sLOOP}, 0")
    e.fence(4)
    e.ins("s_cbranch_scc1 L_kloop", 'other')
    e.salu(f"s_lshl_b32 s{sPRE}, s{sROW}, 10", wr=f"s{sPRE}")
    k_iter(True)

    e.salu(f"s_lshl_b32 s{sTMP}, s{sWAVE}, 11")
    e.valu("v_lshlrev_b32", v(vX), 4, v(vLANE))
    e.valu("v_add_u32", v(vX), f"s{sTMP}", v(vX))
    e.wait(lgkm=0)
    e.ins(f"ds_read_b128 {vr(vT,4)}, v{vX}", 'ds', wr=vr(vT, 4), rd=v(vX))
    e.wait(lgkm=0)
    for i in range(NT):
        e.valu("v_cvt_pk_bf16_f32", v(vT + i), 0, v(vT + i))
    e.valu("v_max_f32", v(vM), v(vT), v(vT + 1))
    e.valu("v_max3_f32", v(vM), v(vM), v(vT + 2), v(vT + 3))

    def allreduce32(op, reg, tmp):
        dpp(op, reg, reg, reg, "quad_perm:[1,0,3,2] row_mask:0xf bank_mask:0xf")
        dpp(op, reg, reg, reg, "quad_perm:[2,3,0,1] row_mask:0xf bank_mask:0xf")
        dpp(op, reg, reg, reg, "row_ror:4 row_mask:0xf bank_mask:0xf")
        dpp(op, reg, reg, reg, "row_ror:8 row_mask:0xf bank_mask:0xf")
        e.valu("v_mov_b32", v(tmp), v(reg))
        perm("v_permlane16_swap_b32", reg, tmp)
        e.valu(op, v(reg), v(reg), v(tmp))

    allreduce32("v_max_f32", vM, vX + 1)
    for i in range(NT):
        e.valu("v_sub_f32", v(vT + i), v(vT + i), v(vM))
    for i in range(NT):
        e.valu("v_mul_f32", v(vT + i), f"s{sCEXP}", v(vT + i))
    for i in range(NT):
        e.valu("v_exp_f32", v(vT + i), v(vT + i), kind='trans')
    e.valu("v_lshlrev_b32", v(vX), 3, v(vLANE))
    e.valu("v_add_u32", v(vX), f"s{sTMP}", v(vX))
    e.valu("v_cvt_pk_bf16_f32", v(vT + 4), v(vT), v(vT + 1))
    e.valu("v_cvt_pk_bf16_f32", v(vT + 5), v(vT + 2), v(vT + 3))
    e.ins(f"ds_write_b64 v{vX}, {vr(vT+4,2)} offset:{P_OFF}", 'ds', rd=[v(vX), vr(vT + 4, 2)])
    e.valu("v_add_f32", v(vL), v(vT), v(vT + 1))
    e.valu("v_add_f32", v(vT + 2), v(vT + 2), v(vT + 3))
    e.valu("v_add_f32", v(vL), v(vL), v(vT + 2))
    allreduce32("v_add_f32", vL, vX + 1)
    e.vwait('vz')
    e.wait(lgkm=0)

    e.salu(f"s_mov_b32 s{sLANE}, 0", wr=f"s{sLANE}")

    def v_iter(last):
        for i in range(D):
            j = i % 8
            r = R(i)
            t = vT + 4 * (j % 2)
            if j == 0:
                e.ins(f"ds_read_b128 {vr(vA,4)}, v{vAA} offset:{(i//8)*16}", 'ds', wr=vr(vA, 4), rd=v(vAA))
            if j % 2 == 0:
                e.ins(f"v_readlane_b32 s{sRA}, v{vZ}, s{sLANE}", 'readlane', wr=f"s{sRA}", rd=[v(vZ), f"s{sLANE}"], lanesel=f"s{sLANE}")
                e.ins(f"v_readlane_b32 s{sRB}, v{vS}, s{sLANE}", 'readlane', wr=f"s{sRB}", rd=[v(vS), f"s{sLANE}"], lanesel=f"s{sLANE}")
                e.salu(f"s_add_u32 s{sLANE}, s{sLANE}, 1", wr=f"s{sLANE}")
                e.nop(1)
                e.salu(f"s_lshl_b32 s{sZ}, s{sRA}, 16", wr=f"s{sZ}")
                e.salu(f"s_and_b32 s{sZ+1}, s{sRA}, 0xffff0000", wr=f"s{sZ+1}")
                e.salu(f"s_lshl_b32 s{sS}, s{sRB}, 16", wr=f"s{sS}")
                e.salu(f"s_and_b32 s{sS+1}, s{sRB}, 0xffff0000", wr=f"s{sS+1}")
            hi = j % 2
            e.vwait(('R', i % D))
            for c in range(4):
                e.valu("v_cvt_f32_i32", v(t + c), v(r + c))
            if not last:
                load_row(i, S_V)
            if exact_int:
                for c in range(4):
                    e.valu("v_cvt_pk_bf16_f32", v(t + c), 0, v(t + c))
            sel = f"op_sel:[0,{hi}] op_sel_hi:[1,{hi}]"
            if pk:
                for c in (0, 2):
                    pkop("v_pk_add_f32", t + c, t + c, sr(sZ, 2), sel + " neg_lo:[0,1] neg_hi:[0,1]")
            else:
                for c in range(4):
                    e.valu("v_subrev_f32", v(t + c), f"s{sZ+hi}", v(t + c))
            for c in range(4):
                e.valu("v_cvt_pk_bf16_f32", v(t + c), 0, v(t + c))
            if pk:
                for c in (0, 2):
                    pkop("v_pk_mul_f32", t + c, t + c, sr(sS, 2), sel)
            else:
                for c in range(4):
                    e.valu("v_mul_f32", v(t + c), f"s{sS+hi}", v(t + c))
            if j % 2 == 1:
                for c in range(4):
                    e.valu("v_cvt_pk_bf16_f32", v(vB + 4 * c + j // 2), v(vT + c), v(vT + 4 + c))
            if j == 7:
                e.wait(lgkm=0)
                for c in range(4):
                    acc = vr(vACC + 4 * c, 4)
                    e.ins(f"v_mfma_f32_16x16x32_bf16 {acc}, {vr(vA,4)}, {vr(vB+4*c,4)}, {acc}", 'mfma',
                          wr=acc, rd=[vr(vA, 4), vr(vB + 4 * c, 4), acc], ab=[vr(vA, 4), vr(vB + 4 * c, 4)], c=acc)

    e.salu(f"s_mov_b32 s{sLOOP}, {NITER-1}")
    e.fence(4)
    e.label("L_vloop")
    q0 = list(e.vq)
    v_iter(False)
    assert e.vq == q0, (e.vq, q0)
    e.valu("v_add_u32", v(vAA), D * 2, v(vAA))
    e.salu(f"s_sub_u32 s{sLOOP}, s{sLOOP}, 1")
    e.salu(f"s_cmp_lg_u32 s{sLOOP}, 0")
    e.fence(4)
    e.ins("s_cbranch_scc1 L_vloop", 'other')
    v_iter(True)

    e.valu("v_lshrrev_b32", v(vT), 4, v(vLANE))
    e.valu("v_lshlrev_b32", v(vT), 9, v(vT))
    e.valu("v_and_b32", v(vT + 1), 15, v(vLANE))
    e.valu("v_lshl_add_u32", v(vT), v(vT + 1), 4, v(vT))
    e.valu("v_add_u32", v(vT), f"s{sTMP}", v(vT))
    e.valu("v_lshrrev_b32", v(vT + 1), 5, v(vLANE))
    e.valu("v_lshlrev_b32", v(vT + 1), 3, v(vT + 1))
    e.salu(f"s_lshl_b32 s{sTMP2}, s{sWAVE}, 4")
    e.valu("v_add_u32", v(vT + 1), f"s{sTMP2}", v(vT + 1))
    e.ins(f"ds_write_b64 v{vT+1}, {vr(vM,2)} offset:{ML_OFF}", 'ds', rd=[v(vT + 1), vr(vM, 2)])
    for u in range(2):
        for h in range(2):
            q = vB + 4 * (2 * u + h)
            for c in range(4):
                e.valu("v_mov_b32", v(q + c), v(vACC + 4 * c + 2 * u + h))
    e.salu("s_mov_b32 exec_hi, 0")
    for u in range(2):
        for h in range(2):
            q = vB + 4 * (2 * u + h)
            e.ins(f"ds_write_b128 v{vT}, {vr(q,4)} offset:{h*1024+u*256}", 'ds', rd=[v(vT), vr(q, 4)])
    e.salu("s_mov_b64 exec, -1")
    e.wait(lgkm=0)
    e.ins("s_barrier", 'other')
    if stamp:
        e.salu("s_memrealtime s[74:75]")
    e.salu(f"s_cmp_lg_u32 s{sWAVE}, 0")
    e.ins("s_cbranch_scc1 L_part_end", 'other')
    e.valu("v_lshlrev_b32", v(vX), 5, v(vLANE))
    e.valu("v_lshrrev_b32", v(vT), 5, v(vLANE))
    e.valu("v_lshlrev_b32", v(vX + 1), 3, v(vT))
    mlb = vT
    ob = vRING
    for w in range(NW):
        e.ins(f"ds_read_b64 {vr(mlb+2*w,2)}, v{vX+1} offset:{ML_OFF+16*w}", 'ds', wr=vr(mlb + 2 * w, 2), rd=v(vX + 1))
    for w in range(NW):
        e.ins(f"ds_read_b128 {vr(ob+8*w,4)}, v{vX} offset:{WREG*w}", 'ds', wr=vr(ob + 8 * w, 4), rd=v(vX))
        e.ins(f"ds_read_b128 {vr(ob+8*w+4,4)}, v{vX} offset:{WREG*w+16}", 'ds', wr=vr(ob + 8 * w + 4, 4), rd=v(vX))
    e.wait(lgkm=0)

    def combine(n, mlb, ob, acc):
        e.valu("v_mov_b32", v(vM), v(mlb))
        for w in range(1, n):
            e.valu("v_max_f32", v(vM), v(vM), v(mlb + 2 * w))
        for w in range(n):
            e.valu("v_sub_f32", v(mlb + 2 * w), v(mlb + 2 * w), v(vM))
        for w in range(n):
            e.valu("v_mul_f32", v(mlb + 2 * w), f"s{sCEXP}", v(mlb + 2 * w))
        for w in range(n):
            e.valu("v_exp_f32", v(mlb + 2 * w), v(mlb + 2 * w), kind='trans')
        e.valu("v_mul_f32", v(vL), v(mlb), v(mlb + 1))
        for c in range(8):
            e.valu("v_mul_f32", v(acc + c), v(mlb), v(ob + c))
        for w in range(1, n):
            e.valu("v_fmac_f32", v(vL), v(mlb + 2 * w), v(mlb + 2 * w + 1))
            for c in range(8):
                e.valu("v_fmac_f32", v(acc + c), v(mlb + 2 * w), v(ob + 8 * w + c))

    combine(NW, mlb, ob, vACC)
    e.salu(f"s_lshl_b32 s{sTMP2}, s2, 11")
    e.ins(f"buffer_store_dwordx4 {vr(vACC,4)}, v{vX}, {sr(sWS,4)}, s{sTMP2} offen sc1", 'vstore', rd=[vr(vACC, 4), v(vX)], data=vr(vACC, 4))
    e.ins(f"buffer_store_dwordx4 {vr(vACC+4,4)}, v{vX}, {sr(sWS,4)}, s{sTMP2} offen offset:16 sc1", 'vstore', rd=[vr(vACC + 4, 4), v(vX)], data=vr(vACC + 4, 4))
    e.salu(f"s_lshl_b32 s{sTMP2}, s2, 4")
    e.salu(f"s_add_u32 s{sTMP2}, s{sTMP2}, 0x400000")
    e.salu("s_mov_b32 exec_lo, 1")
    e.salu("s_mov_b32 exec_hi, 1")
    e.ins(f"buffer_store_dwordx2 {vr(vM,2)}, v{vX+1}, {sr(sWS,4)}, s{sTMP2} offen sc1", 'vstore', rd=[vr(vM, 2), v(vX + 1)])
    e.salu(f"s_mov_b32 s{S_T}, s20")
    e.salu(f"s_and_b32 s{S_T+1}, s21, 0xffff")
    e.salu(f"s_mov_b32 s{S_T+2}, 256")
    e.salu(f"s_mov_b32 s{S_T+3}, 0x00020000")
    e.salu(f"s_lshl_b32 s{sTMP2}, s{sBH}, 2")
    e.valu("v_mov_b32", v(vT), 1)
    e.valu("v_mov_b32", v(vT + 1), 0)
    e.salu("s_mov_b32 exec_hi, 0")
    e.wait(vm=0)
    e.ins(f"buffer_atomic_add v{vT}, v{vT+1}, {sr(S_T,4)}, s{sTMP2} offen sc0 sc1", 'vmem', wr=v(vT), rd=[v(vT), v(vT + 1)])
    e.wait(vm=0)
    e.ins(f"v_readfirstlane_b32 s{sTMP}, v{vT}", 'readlane', wr=f"s{sTMP}", rd=v(vT))
    e.salu("s_mov_b64 exec, -1")
    e.nop(2)
    e.salu(f"s_cmp_lg_u32 s{sTMP}, {NSPLIT-1}")
    e.ins("s_cbranch_scc1 " + ("L_stamp" if stamp else "L_part_end"), 'other')
    e.salu(f"s_mul_i32 s{sTMP}, s{sBH}, {NSPLIT*2048}")
    e.salu(f"s_mul_i32 s{sTMP2}, s{sBH}, {NSPLIT*16}")
    e.salu(f"s_add_u32 s{sTMP2}, s{sTMP2}, 0x400000")
    for sp in range(NSPLIT):
        e.ins(f"buffer_load_dwordx2 {vr(mlb+2*sp,2)}, v{vX+1}, {sr(sWS,4)}, s{sTMP2} offen offset:{16*sp} sc1", 'vmem', wr=vr(mlb + 2 * sp, 2), rd=v(vX + 1))
    for sp in range(NSPLIT):
        e.ins(f"buffer_load_dwordx4 {vr(ob+8*sp,4)}, v{vX}, {sr(sWS,4)}, s{sTMP} offen offset:{(sp%2)*2048} sc1", 'vmem', wr=vr(ob + 8 * sp, 4), rd=v(vX))
        e.ins(f"buffer_load_dwordx4 {vr(ob+8*sp+4,4)}, v{vX}, {sr(sWS,4)}, s{sTMP} offen offset:{(sp%2)*2048+16} sc1", 'vmem', wr=vr(ob + 8 * sp + 4, 4), rd=v(vX))
        if sp % 2 == 1:
            e.salu(f"s_add_u32 s{sTMP}, s{sTMP}, 4096")
    e.salu(f"s_mov_b32 s{S_T}, s18")
    e.salu(f"s_and_b32 s{S_T+1}, s19, 0xffff")
    e.salu(f"s_mov_b32 s{S_T+2}, {8*16*256*2}")
    e.salu(f"s_mov_b32 s{S_T+3}, 0x00020000")
    e.salu(f"s_lshl_b32 s{sTMP2}, s{sBH}, 10")
    e.valu("v_lshlrev_b32", v(vX + 1), 4, v(vLANE))
    e.wait(vm=0)
    combine(NSPLIT, mlb, ob, vACC)
    e.valu("v_rcp_f32", v(vL), v(vL), kind='trans')
    for c in range(8):
        e.valu("v_mul_f32", v(vACC + c), v(vACC + c), v(vL))
    for c in range(4):
        e.valu("v_cvt_pk_bf16_f32", v(vB + c), v(vACC + 2 * c), v(vACC + 2 * c + 1))
    e.ins(f"buffer_store_dwordx4 {vr(vB,4)}, v{vX+1}, {sr(S_T,4)}, s{sTMP2} offen", 'vstore', rd=[vr(vB, 4), v(vX + 1)], data=vr(vB, 4))
    if stamp:
        e.raw("""L_stamp:
    s_waitcnt vmcnt(0)
    s_memrealtime s[70:71]
    s_mov_b32 exec_lo, 1
    s_mov_b32 exec_hi, 0
    s_getreg_b32 s72, hwreg(HW_REG_XCC_ID)
    s_waitcnt lgkmcnt(0)
    s_sub_u32 s73, s70, s74
    v_mov_b32 v8, s70
    v_mov_b32 v9, s68
    v_mov_b32 v10, s72
    v_mov_b32 v11, s73
    v_mov_b32 v12, 0
    s_lshl_b32 s40, s2, 4
    s_add_u32 s40, s40, 0x800000
    s_nop 4
    buffer_store_dwordx4 v[8:11], v12, s[52:55], s40 offen
    s_waitcnt vmcnt(0)""")
    e.label("L_part_end")
    e.ins("s_endpgm", 'other')

    nv_alloc = ((NV + 7) // 8) * 8
    hdr = open("cdna_kernels/" + NAME + ".s.ref").read().split("; @launch")[0]
    out = hdr
    out += f"; @launch grid=({NWG},1,1) block=({NW*64},1,1) lds={LDS}\n"
    out += f"; params: D={D} flags={flags} exact_int={exact_int} pk={pk}\n"
    out += '.amdgcn_target "amdgcn-amd-amdhsa--gfx950"\n.text\n'
    out += "\n".join(e.lines) + "\n"
    out += f""".section .rodata,"a"
.p2align 6
.amdhsa_kernel {kname}
  .amdhsa_next_free_vgpr {nv_alloc}
  .amdhsa_next_free_sgpr {80 if stamp else 72}
  .amdhsa_accum_offset {nv_alloc}
  .amdhsa_group_segment_fixed_size 0
  .amdhsa_kernarg_size 80
  .amdhsa_user_sgpr_count 2
  .amdhsa_user_sgpr_kernarg_segment_ptr 1
  .amdhsa_system_sgpr_workgroup_id_x 1
  .amdhsa_float_denorm_mode_32 3
.end_amdhsa_kernel
"""
    return out


if __name__ == "__main__":
    ap = argparse.ArgumentParser()
    ap.add_argument("--d", type=int, default=16)
    ap.add_argument("--flags", default="nt")
    ap.add_argument("--noexact", action="store_true")
    ap.add_argument("--nopk", action="store_true")
    ap.add_argument("--stamp", action="store_true")
    ap.add_argument("-o", default="cdna_kernels/" + NAME + ".s")
    a = ap.parse_args()
    s = gen(a.d, a.flags, not a.noexact, not a.nopk, a.stamp)
    open(a.o, "w").write(s)
```

```python
import sys, argparse, math, struct
from gen import Em, regs, NAME


class Em2(Em):
    def __init__(self):
        super().__init__()
        self.vq = []

    def vissue(self, tag):
        self.vq.append(tag)

    def vwait(self, tag):
        idx = max(i for i, t in enumerate(self.vq) if t == tag)
        n = len(self.vq) - 1 - idx
        assert n <= 63
        self.wait(vm=n)
        self.vq = self.vq[idx + 1:]

    def vwait_all(self):
        self.wait(vm=0)
        self.vq = []


def gen(D=16, flags="nt", exact_int=True, pk=True, stamp=False, early=True):
    NW, TPW, CHK = 8, 128, 4
    RPG = 128 // NW
    KD = max(1, D // RPG)
    assert D in (4, 8, 16, 32)
    BODY = max(D, RPG)
    JUMP = NW * CHK * 1024
    TPG = NW * TPW
    NSPLIT = 4096 // TPG
    NWG = 64 * NSPLIT
    NG = TPW // RPG
    NITER = TPW // BODY
    WREG = 2048
    LDS = NW * WREG + NW * 16
    ML_OFF = NW * WREG
    NT = 4
    P_OFF, Z_OFF = 1024, 1536
    C_EXP = 0.0625 * 1.4426950408889634
    cexp_hex = "0x%08x" % struct.unpack('<I', struct.pack('<f', C_EXP))[0]

    S_K, S_V, S_T = 24, 28, 32
    sBH, sSPLIT, sWAVE, sROW, sTMP, sTMP2, sLOOP, sLANE = 36, 37, 38, 39, 40, 41, 42, 43
    sZ, sS = 44, 46
    sRA, sRB = 48, 49
    sCEXP, sPRE = 50, 51
    sWS = 52
    sWGROW, sSCO = 58, 59
    S_KS, S_KZ = 60, 64
    vTID, vOFF, vLANE, vZ, vS, vLA, vAA, vL8 = 0, 1, 2, 3, 4, 5, 6, 7
    vT = 8
    vKZ, vKS, vQ = 24, 28, 32
    vM, vL, vX = 36, 37, 38
    vA = 40
    vB = 44
    vACC = 60
    vSC1 = 76
    vRING = 80
    NV = vRING + max(4 * D, 64)

    e = Em2()
    R = lambda i: vRING + 4 * (i % D)
    v = lambda i: f"v{i}"
    vr = lambda a, n: f"v[{a}:{a+n-1}]"
    sr = lambda a, n: f"s[{a}:{a+n-1}]"
    SCB = [vA, vSC1]

    kname = NAME + "_kernel"
    e.raw(f".globl {kname}")
    e.raw(".p2align 8")
    e.raw(f".type {kname},@function")
    e.label(kname)
    e.salu(f"s_cmp_ge_u32 s2, {NWG}", rd='s2')
    e.ins("s_cbranch_scc1 L_part_end", 'other')
    if stamp:
        e.salu("s_memrealtime s[68:69]")
    e.salu("s_load_dwordx16 s[4:19], s[0:1], 0", wr='s[4:19]')
    e.salu("s_load_dwordx4 s[20:23], s[0:1], 64", wr='s[20:23]')
    e.valu("v_and_b32", v(vLANE), 63, v(vTID))
    e.valu("v_lshrrev_b32", v(vX), 6, v(vTID))
    e.valu("v_lshlrev_b32", v(vOFF), 4, v(vLANE))
    e.ins(f"v_readfirstlane_b32 s{sWAVE}, v{vX}", 'readlane', wr=f"s{sWAVE}", rd=v(vX))
    e.valu("v_lshlrev_b32", v(vL8), 3, v(vLANE))
    e.salu(f"s_lshr_b32 s{sBH}, s2, 2", wr=f"s{sBH}")
    e.salu(f"s_lshl_b32 s{sWGROW}, s2, 10")
    e.salu(f"s_mov_b32 s{S_K+2}, 0x10000000")
    e.salu(f"s_mov_b32 s{S_K+3}, 0x00020000")
    e.salu(f"s_lshl_b32 s{sTMP2}, s{sWAVE}, 2")
    e.salu(f"s_add_u32 s{sROW}, s{sWGROW}, s{sTMP2}")
    e.salu(f"s_lshl_b32 s{sPRE}, s{sROW}, 10")
    e.salu(f"s_lshl_b32 s{sSCO}, s2, 12")
    e.salu(f"s_mov_b32 s{S_KS+2}, {8 * 8 * 32 * 256 * 2}")
    e.salu(f"s_mov_b32 s{S_KS+3}, 0x00020000")
    e.salu(f"s_mov_b32 s{S_KZ+2}, {8 * 8 * 32 * 256 * 2}")
    e.salu(f"s_mov_b32 s{S_KZ+3}, 0x00020000")
    e.wait(lgkm=0)
    e.salu(f"s_mov_b32 s{S_K}, s6")
    e.salu(f"s_and_b32 s{S_K+1}, s7, 0xffff")
    e.salu(f"s_mov_b32 s{S_KS}, s10")
    e.salu(f"s_and_b32 s{S_KS+1}, s11, 0xffff")
    e.salu(f"s_mov_b32 s{S_KZ}, s12")
    e.salu(f"s_and_b32 s{S_KZ+1}, s13, 0xffff")

    fl = (" " + flags) if flags else ""

    def load_row(i, srd):
        e.ins(f"buffer_load_dwordx4 {vr(R(i),4)}, v{vOFF}, {sr(srd,4)}, s{sPRE} offen offset:{(i%4)*1024}{fl}",
              'vmem', wr=vr(R(i), 4), rd=[v(vOFF), sr(srd, 4), f"s{sPRE}"])
        e.vissue(('R', i % D))
        if i % 4 == 3:
            e.salu(f"s_add_u32 s{sPRE}, s{sPRE}, {JUMP}", wr=f"s{sPRE}")

    def load_scales(b):
        e.ins(f"buffer_load_dwordx2 {vr(SCB[b],2)}, v{vL8}, {sr(S_KS,4)}, s{sSCO} offen", 'vmem', wr=vr(SCB[b], 2), rd=v(vL8))
        e.vissue(('s', b))
        e.ins(f"buffer_load_dwordx2 {vr(SCB[b]+2,2)}, v{vL8}, {sr(S_KZ,4)}, s{sSCO} offen", 'vmem', wr=vr(SCB[b] + 2, 2), rd=v(vL8))
        e.vissue(('S', b))
        e.salu(f"s_add_u32 s{sSCO}, s{sSCO}, 512", wr=f"s{sSCO}")

    def unpack_scales(b):
        for (d, src) in ((vKS, SCB[b]), (vKZ, SCB[b] + 2)):
            e.valu("v_lshlrev_b32", v(d), 16, v(src))
            e.valu("v_and_b32", v(d + 1), "0xffff0000", v(src))
            e.valu("v_lshlrev_b32", v(d + 2), 16, v(src + 1))
            e.valu("v_and_b32", v(d + 3), "0xffff0000", v(src + 1))

    def small_srd(p, nbytes):
        e.salu(f"s_mov_b32 s{S_T}, s{p}")
        e.salu(f"s_and_b32 s{S_T+1}, s{p+1}, 0xffff")
        e.salu(f"s_mov_b32 s{S_T+2}, {nbytes}")
        e.salu(f"s_mov_b32 s{S_T+3}, 0x00020000")

    def small_loads():
        small_srd(4, 8 * 16 * 256 * 2)
        e.salu(f"s_lshl_b32 s{sTMP2}, s{sBH}, 10")
        e.ins(f"buffer_load_dwordx2 {vr(vQ,2)}, v{vL8}, {sr(S_T,4)}, s{sTMP2} offen", 'vmem', wr=vr(vQ, 2), rd=v(vL8))
        e.vissue('q0')
        e.ins(f"buffer_load_dwordx2 {vr(vQ+2,2)}, v{vL8}, {sr(S_T,4)}, s{sTMP2} offen offset:512", 'vmem', wr=vr(vQ + 2, 2), rd=v(vL8))
        e.vissue('q')

    def vscale_loads():
        e.valu("v_lshrrev_b32", v(vT), 1, v(vLANE))
        e.valu("v_mul_u32_u24", v(vT), NW * CHK * 2, v(vT))
        e.valu("v_and_b32", v(vT + 1), 1, v(vLANE))
        e.valu("v_lshl_add_u32", v(vT), v(vT + 1), 2, v(vT))
        e.salu(f"s_lshl_b32 s{sTMP2}, s{sROW}, 1")
        small_srd(14, 8 * 8 * 4096 * 2)
        e.ins(f"buffer_load_dword v{vS}, v{vT}, {sr(S_T,4)}, s{sTMP2} offen", 'vmem', wr=v(vS), rd=v(vT))
        e.vissue('vs')
        small_srd(16, 8 * 8 * 4096 * 2)
        e.ins(f"buffer_load_dword v{vZ}, v{vT}, {sr(S_T,4)}, s{sTMP2} offen", 'vmem', wr=v(vZ), rd=v(vT))
        e.vissue('vz')

    small_loads()
    for g in range(KD):
        load_scales(g % 2)
        for i in range(min(RPG, D)):
            load_row(g * RPG + i, S_K)

    e.salu(f"s_mov_b32 s{S_V}, s8")
    e.salu(f"s_and_b32 s{S_V+1}, s9, 0xffff")
    e.salu(f"s_mov_b32 s{S_V+2}, 0x10000000")
    e.salu(f"s_mov_b32 s{S_V+3}, 0x00020000")
    e.salu(f"s_mov_b32 s{sWS}, s22")
    e.salu(f"s_and_b32 s{sWS+1}, s23, 0xffff")
    e.salu(f"s_mov_b32 s{sWS+2}, 0x40000000")
    e.salu(f"s_mov_b32 s{sWS+3}, 0x00020000")
    e.salu(f"s_mov_b32 s{sCEXP}, {cexp_hex}")

    e.salu(f"s_lshl_b32 s{sTMP}, s{sWAVE}, 11")
    e.valu("v_lshrrev_b32", v(vT), 5, v(vLANE))
    e.valu("v_lshlrev_b32", v(vLA), 9, v(vT))
    e.valu("v_bfe_u32", v(vT), v(vLANE), 4, 1)
    e.valu("v_lshl_add_u32", v(vLA), v(vT), 2, v(vLA))
    e.valu("v_bfe_u32", v(vT), v(vLANE), 3, 1)
    e.valu("v_lshl_add_u32", v(vLA), v(vT), 3, v(vLA))
    e.valu("v_bfe_u32", v(vT), v(vLANE), 2, 1)
    e.valu("v_lshl_add_u32", v(vLA), v(vT), 4, v(vLA))
    e.valu("v_add_u32", v(vLA), f"s{sTMP}", v(vLA))
    e.valu("v_and_b32", v(vT), 15, v(vLANE))
    e.valu("v_lshrrev_b32", v(vT + 1), 1, v(vT))
    e.valu("v_lshrrev_b32", v(vT + 2), 4, v(vLANE))
    e.ins(f"v_cmp_eq_u32 vcc, v{vT+1}, v{vT+2}", 'valu', wr='vcc', rd=[v(vT + 1), v(vT + 2)])
    e.valu("v_and_b32", v(vT + 3), 1, v(vLANE))
    e.valu("v_lshlrev_b32", v(vT + 3), 8, v(vT + 3))
    e.valu("v_add_u32", v(vT + 3), P_OFF, v(vT + 3))
    e.valu("v_mov_b32", v(vT + 4), Z_OFF)
    e.ins(f"v_cndmask_b32 v{vAA}, v{vT+4}, v{vT+3}, vcc", 'valu', wr=v(vAA), rd=[v(vT + 4), v(vT + 3), 'vcc'])
    e.valu("v_add_u32", v(vAA), f"s{sTMP}", v(vAA))
    e.valu("v_lshlrev_b32", v(vT), 2, v(vLANE))
    e.valu("v_add_u32", v(vT), f"s{sTMP}", v(vT))
    e.valu("v_mov_b32", v(vT + 1), 0)
    e.ins(f"ds_write_b32 v{vT}, v{vT+1} offset:{Z_OFF}", 'ds', rd=[v(vT), v(vT + 1)])
    for i in range(16):
        e.valu("v_mov_b32", v(vACC + i), 0)

    def perm(op, a, b):
        e.ins(f"{op} v{a}, v{b}", 'perm', wr=[v(a), v(b)], rd=[v(a), v(b)])

    def dpp(op, d, s0, s1, ctl):
        e.ins(f"{op}_dpp v{d}, v{s0}, v{s1} {ctl}", 'dpp', wr=v(d), rd=[v(s0)])

    def pkop(op, d, a, b, mods=""):
        e.ins(f"{op} {vr(d,2)}, {vr(a,2)}, {b} {mods}".rstrip(), 'valu', wr=vr(d, 2), rd=[vr(a, 2), b])

    def k_row(i, j, srd_next):
        r = R(i)
        t = vT + 4 * (j % 2)
        kk = vT + 8 + 2 * (j % 2)
        a0, a1 = vB + 2 * j, vB + 2 * j + 1
        e.vwait(('R', i % D))
        for c in range(4):
            e.valu("v_cvt_f32_i32", v(t + c), v(r + c))
        load_row(i, srd_next)
        if exact_int:
            for c in range(4):
                e.valu("v_cvt_pk_bf16_f32", v(t + c), 0, v(t + c))
        if pk:
            for c in (0, 2):
                pkop("v_pk_add_f32", t + c, t + c, vr(vKZ + c, 2), "neg_lo:[0,1] neg_hi:[0,1]")
        else:
            for c in range(4):
                e.valu("v_sub_f32", v(t + c), v(t + c), v(vKZ + c))
        for c in range(4):
            e.valu("v_cvt_pk_bf16_f32", v(t + c), 0, v(t + c))
        if pk:
            for c in (0, 2):
                pkop("v_pk_mul_f32", t + c, t + c, vr(vKS + c, 2))
        else:
            for c in range(4):
                e.valu("v_mul_f32", v(t + c), v(t + c), v(vKS + c))
        e.valu("v_cvt_pk_bf16_f32", v(kk), v(t), v(t + 1))
        e.valu("v_cvt_pk_bf16_f32", v(kk + 1), v(t + 2), v(t + 3))
        for (acc, k_, q_, first) in ((a0, kk, vQ, True), (a1, kk, vQ + 2, True), (a0, kk + 1, vQ + 1, False), (a1, kk + 1, vQ + 3, False)):
            c_ = "0" if first else v(acc)
            e.ins(f"v_dot2_f32_bf16 v{acc}, v{k_}, v{q_}, {c_}", 'dot', wr=v(acc),
                  rd=[v(k_), v(q_)] + ([] if first else [v(acc)]), ab=[v(k_), v(q_)])

    def k_reduce(lds_off):
        for j in range(8):
            perm("v_permlane32_swap_b32", vB + 2 * j, vB + 2 * j + 1)
        for j in range(8):
            e.valu("v_add_f32", v(vB + 2 * j), v(vB + 2 * j), v(vB + 2 * j + 1))
        for j in range(4):
            perm("v_permlane16_swap_b32", vB + 4 * j, vB + 4 * j + 2)
        for j in range(4):
            e.valu("v_add_f32", v(vB + 4 * j), v(vB + 4 * j), v(vB + 4 * j + 2))
        for j in range(2):
            X, Y = vB + 8 * j, vB + 8 * j + 4
            dpp("v_add_f32", X, X, X, "row_ror:8 row_mask:0xf bank_mask:0x3")
            dpp("v_add_f32", X, Y, Y, "row_ror:8 row_mask:0xf bank_mask:0xc")
        X, Y = vB, vB + 8
        dpp("v_add_f32", X, X, X, "row_shl:4 row_mask:0xf bank_mask:0x5")
        dpp("v_add_f32", X, Y, Y, "row_shr:4 row_mask:0xf bank_mask:0xa")
        dpp("v_add_f32", X, X, X, "quad_perm:[1,0,3,2] row_mask:0xf bank_mask:0xf")
        dpp("v_add_f32", X, X, X, "quad_perm:[2,3,0,1] row_mask:0xf bank_mask:0xf")
        e.ins(f"ds_write_b32 v{vLA}, v{X} offset:{lds_off}", 'ds', rd=[v(vLA), v(X)])

    def k_iter(tail):
        for g in range(KD):
            b = g % 2
            e.vwait(('S', b))
            unpack_scales(b)
            if not tail:
                load_scales(b)
            elif g == 0:
                vscale_loads()
            for ii in range(RPG):
                i = g * RPG + ii
                if tail and i + D == BODY:
                    e.salu(f"s_lshl_b32 s{sPRE}, s{sROW}, 10", wr=f"s{sPRE}")
                k_row(i, i % 8, S_V if (tail and i + D >= BODY) else S_K)
                if i % 8 == 7:
                    k_reduce((i // 8) * 32)

    e.salu(f"s_mov_b32 s{sLOOP}, {NITER-1}")
    e.fence(4)
    e.label("L_kloop")
    q0 = [t for t in e.vq if t not in ('q0', 'q')]
    k_iter(False)
    assert e.vq == q0[len(q0) - len(e.vq):], (e.vq, q0)
    e.vq = list(q0)
    e.valu("v_add_u32", v(vLA), BODY * 4, v(vLA))
    e.salu(f"s_sub_u32 s{sLOOP}, s{sLOOP}, 1")
    e.salu(f"s_cmp_lg_u32 s{sLOOP}, 0")
    e.fence(4)
    e.ins("s_cbranch_scc1 L_kloop", 'other')
    k_iter(True)

    e.salu(f"s_lshl_b32 s{sTMP}, s{sWAVE}, 11")
    e.valu("v_lshlrev_b32", v(vX), 4, v(vLANE))
    e.valu("v_add_u32", v(vX), f"s{sTMP}", v(vX))
    e.wait(lgkm=0)
    e.ins(f"ds_read_b128 {vr(vT,4)}, v{vX}", 'ds', wr=vr(vT, 4), rd=v(vX))
    e.wait(lgkm=0)
    for i in range(NT):
        e.valu("v_cvt_pk_bf16_f32", v(vT + i), 0, v(vT + i))
    e.valu("v_max_f32", v(vM), v(vT), v(vT + 1))
    e.valu("v_max3_f32", v(vM), v(vM), v(vT + 2), v(vT + 3))

    def allreduce32(op, reg, tmp):
        dpp(op, reg, reg, reg, "quad_perm:[1,0,3,2] row_mask:0xf bank_mask:0xf")
        dpp(op, reg, reg, reg, "quad_perm:[2,3,0,1] row_mask:0xf bank_mask:0xf")
        dpp(op, reg, reg, reg, "row_ror:4 row_mask:0xf bank_mask:0xf")
        dpp(op, reg, reg, reg, "row_ror:8 row_mask:0xf bank_mask:0xf")
        e.valu("v_mov_b32", v(tmp), v(reg))
        perm("v_permlane16_swap_b32", reg, tmp)
        e.valu(op, v(reg), v(reg), v(tmp))

    allreduce32("v_max_f32", vM, vX + 1)
    for i in range(NT):
        e.valu("v_sub_f32", v(vT + i), v(vT + i), v(vM))
    for i in range(NT):
        e.valu("v_mul_f32", v(vT + i), f"s{sCEXP}", v(vT + i))
    for i in range(NT):
        e.valu("v_exp_f32", v(vT + i), v(vT + i), kind='trans')
    e.valu("v_lshlrev_b32", v(vX), 3, v(vLANE))
    e.valu("v_add_u32", v(vX), f"s{sTMP}", v(vX))
    e.valu("v_cvt_pk_bf16_f32", v(vT + 4), v(vT), v(vT + 1))
    e.valu("v_cvt_pk_bf16_f32", v(vT + 5), v(vT + 2), v(vT + 3))
    e.ins(f"ds_write_b64 v{vX}, {vr(vT+4,2)} offset:{P_OFF}", 'ds', rd=[v(vX), vr(vT + 4, 2)])
    e.valu("v_add_f32", v(vL), v(vT), v(vT + 1))
    e.valu("v_add_f32", v(vT + 2), v(vT + 2), v(vT + 3))
    e.valu("v_add_f32", v(vL), v(vL), v(vT + 2))
    allreduce32("v_add_f32", vL, vX + 1)
    if 'vz' in e.vq:
        e.vwait('vz')
    e.wait(lgkm=0)

    e.salu(f"s_mov_b32 s{sLANE}, 0", wr=f"s{sLANE}")

    def v_iter(last):
        for i in range(BODY):
            j = i % 8
            r = R(i)
            t = vT + 4 * (j % 2)
            if j == 0:
                e.ins(f"ds_read_b128 {vr(vA,4)}, v{vAA} offset:{(i//8)*16}", 'ds', wr=vr(vA, 4), rd=v(vAA))
            if j % 2 == 0:
                e.ins(f"v_readlane_b32 s{sRA}, v{vZ}, s{sLANE}", 'readlane', wr=f"s{sRA}", rd=[v(vZ), f"s{sLANE}"], lanesel=f"s{sLANE}")
                e.ins(f"v_readlane_b32 s{sRB}, v{vS}, s{sLANE}", 'readlane', wr=f"s{sRB}", rd=[v(vS), f"s{sLANE}"], lanesel=f"s{sLANE}")
                e.salu(f"s_add_u32 s{sLANE}, s{sLANE}, 1", wr=f"s{sLANE}")
                e.nop(1)
                e.salu(f"s_lshl_b32 s{sZ}, s{sRA}, 16", wr=f"s{sZ}")
                e.salu(f"s_and_b32 s{sZ+1}, s{sRA}, 0xffff0000", wr=f"s{sZ+1}")
                e.salu(f"s_lshl_b32 s{sS}, s{sRB}, 16", wr=f"s{sS}")
                e.salu(f"s_and_b32 s{sS+1}, s{sRB}, 0xffff0000", wr=f"s{sS+1}")
            hi = j % 2
            e.vwait(('R', i % D))
            for c in range(4):
                e.valu("v_cvt_f32_i32", v(t + c), v(r + c))
            if not (last and i + D >= BODY):
                load_row(i, S_V)
            if exact_int:
                for c in range(4):
                    e.valu("v_cvt_pk_bf16_f32", v(t + c), 0, v(t + c))
            sel = f"op_sel:[0,{hi}] op_sel_hi:[1,{hi}]"
            if pk:
                for c in (0, 2):
                    pkop("v_pk_add_f32", t + c, t + c, sr(sZ, 2), sel + " neg_lo:[0,1] neg_hi:[0,1]")
            else:
                for c in range(4):
                    e.valu("v_subrev_f32", v(t + c), f"s{sZ+hi}", v(t + c))
            for c in range(4):
                e.valu("v_cvt_pk_bf16_f32", v(t + c), 0, v(t + c))
            if pk:
                for c in (0, 2):
                    pkop("v_pk_mul_f32", t + c, t + c, sr(sS, 2), sel)
            else:
                for c in range(4):
                    e.valu("v_mul_f32", v(t + c), f"s{sS+hi}", v(t + c))
            if j % 2 == 1:
                for c in range(4):
                    e.valu("v_cvt_pk_bf16_f32", v(vB + 4 * c + j // 2), v(vT + c), v(vT + 4 + c))
            if j == 7:
                e.wait(lgkm=0)
                for c in range(4):
                    acc = vr(vACC + 4 * c, 4)
                    e.ins(f"v_mfma_f32_16x16x32_bf16 {acc}, {vr(vA,4)}, {vr(vB+4*c,4)}, {acc}", 'mfma',
                          wr=acc, rd=[vr(vA, 4), vr(vB + 4 * c, 4), acc], ab=[vr(vA, 4), vr(vB + 4 * c, 4)], c=acc)

    e.salu(f"s_mov_b32 s{sLOOP}, {NITER-1}")
    e.fence(4)
    e.label("L_vloop")
    q0 = list(e.vq)
    v_iter(False)
    assert e.vq == q0, (e.vq, q0)
    e.valu("v_add_u32", v(vAA), BODY * 2, v(vAA))
    e.salu(f"s_sub_u32 s{sLOOP}, s{sLOOP}, 1")
    e.salu(f"s_cmp_lg_u32 s{sLOOP}, 0")
    e.fence(4)
    e.ins("s_cbranch_scc1 L_vloop", 'other')
    v_iter(True)

    e.valu("v_lshrrev_b32", v(vT), 4, v(vLANE))
    e.valu("v_lshlrev_b32", v(vT), 9, v(vT))
    e.valu("v_and_b32", v(vT + 1), 15, v(vLANE))
    e.valu("v_lshl_add_u32", v(vT), v(vT + 1), 4, v(vT))
    e.valu("v_add_u32", v(vT), f"s{sTMP}", v(vT))
    e.valu("v_lshrrev_b32", v(vT + 1), 5, v(vLANE))
    e.valu("v_lshlrev_b32", v(vT + 1), 3, v(vT + 1))
    e.salu(f"s_lshl_b32 s{sTMP2}, s{sWAVE}, 4")
    e.valu("v_add_u32", v(vT + 1), f"s{sTMP2}", v(vT + 1))
    e.ins(f"ds_write_b64 v{vT+1}, {vr(vM,2)} offset:{ML_OFF}", 'ds', rd=[v(vT + 1), vr(vM, 2)])
    for u in range(2):
        for h in range(2):
            q = vB + 4 * (2 * u + h)
            for c in range(4):
                e.valu("v_mov_b32", v(q + c), v(vACC + 4 * c + 2 * u + h))
    e.salu("s_mov_b32 exec_hi, 0")
    for u in range(2):
        for h in range(2):
            q = vB + 4 * (2 * u + h)
            e.ins(f"ds_write_b128 v{vT}, {vr(q,4)} offset:{h*1024+u*256}", 'ds', rd=[v(vT), vr(q, 4)])
    e.salu("s_mov_b64 exec, -1")
    e.wait(lgkm=0)
    e.ins("s_barrier", 'other')
    if stamp:
        e.salu("s_memrealtime s[74:75]")
    e.salu(f"s_cmp_lg_u32 s{sWAVE}, 0")
    e.ins("s_cbranch_scc1 L_part_end", 'other')
    e.valu("v_lshlrev_b32", v(vX), 5, v(vLANE))
    e.valu("v_lshrrev_b32", v(vT), 5, v(vLANE))
    e.valu("v_lshlrev_b32", v(vX + 1), 3, v(vT))
    mlb = vT
    ob = vRING
    for w in range(NW):
        e.ins(f"ds_read_b64 {vr(mlb+2*w,2)}, v{vX+1} offset:{ML_OFF+16*w}", 'ds', wr=vr(mlb + 2 * w, 2), rd=v(vX + 1))
    for w in range(NW):
        e.ins(f"ds_read_b128 {vr(ob+8*w,4)}, v{vX} offset:{WREG*w}", 'ds', wr=vr(ob + 8 * w, 4), rd=v(vX))
        e.ins(f"ds_read_b128 {vr(ob+8*w+4,4)}, v{vX} offset:{WREG*w+16}", 'ds', wr=vr(ob + 8 * w + 4, 4), rd=v(vX))
    e.wait(lgkm=0)

    def combine(n, mlb, ob, acc):
        e.valu("v_mov_b32", v(vM), v(mlb))
        for w in range(1, n):
            e.valu("v_max_f32", v(vM), v(vM), v(mlb + 2 * w))
        for w in range(n):
            e.valu("v_sub_f32", v(mlb + 2 * w), v(mlb + 2 * w), v(vM))
        for w in range(n):
            e.valu("v_mul_f32", v(mlb + 2 * w), f"s{sCEXP}", v(mlb + 2 * w))
        for w in range(n):
            e.valu("v_exp_f32", v(mlb + 2 * w), v(mlb + 2 * w), kind='trans')
        e.valu("v_mul_f32", v(vL), v(mlb), v(mlb + 1))
        for c in range(8):
            e.valu("v_mul_f32", v(acc + c), v(mlb), v(ob + c))
        for w in range(1, n):
            e.valu("v_fmac_f32", v(vL), v(mlb + 2 * w), v(mlb + 2 * w + 1))
            for c in range(8):
                e.valu("v_fmac_f32", v(acc + c), v(mlb + 2 * w), v(ob + 8 * w + c))

    combine(NW, mlb, ob, vACC)
    e.salu(f"s_lshl_b32 s{sTMP2}, s2, 11")
    e.ins(f"buffer_store_dwordx4 {vr(vACC,4)}, v{vX}, {sr(sWS,4)}, s{sTMP2} offen sc1", 'vstore', rd=[vr(vACC, 4), v(vX)], data=vr(vACC, 4))
    e.ins(f"buffer_store_dwordx4 {vr(vACC+4,4)}, v{vX}, {sr(sWS,4)}, s{sTMP2} offen offset:16 sc1", 'vstore', rd=[vr(vACC + 4, 4), v(vX)], data=vr(vACC + 4, 4))
    e.salu(f"s_lshl_b32 s{sTMP2}, s2, 4")
    e.salu(f"s_add_u32 s{sTMP2}, s{sTMP2}, 0x400000")
    e.salu("s_mov_b32 exec_lo, 1")
    e.salu("s_mov_b32 exec_hi, 1")
    e.ins(f"buffer_store_dwordx2 {vr(vM,2)}, v{vX+1}, {sr(sWS,4)}, s{sTMP2} offen sc1", 'vstore', rd=[vr(vM, 2), v(vX + 1)])
    e.salu(f"s_mov_b32 s{S_T}, s20")
    e.salu(f"s_and_b32 s{S_T+1}, s21, 0xffff")
    e.salu(f"s_mov_b32 s{S_T+2}, 256")
    e.salu(f"s_mov_b32 s{S_T+3}, 0x00020000")
    e.salu(f"s_lshl_b32 s{sTMP2}, s{sBH}, 2")
    e.valu("v_mov_b32", v(vT), 1)
    e.valu("v_mov_b32", v(vT + 1), 0)
    e.salu("s_mov_b32 exec_hi, 0")
    e.wait(vm=0)
    e.ins(f"buffer_atomic_add v{vT}, v{vT+1}, {sr(S_T,4)}, s{sTMP2} offen sc0 sc1", 'vmem', wr=v(vT), rd=[v(vT), v(vT + 1)])
    e.wait(vm=0)
    e.ins(f"v_readfirstlane_b32 s{sTMP}, v{vT}", 'readlane', wr=f"s{sTMP}", rd=v(vT))
    e.salu("s_mov_b64 exec, -1")
    e.nop(2)
    e.salu(f"s_cmp_lg_u32 s{sTMP}, {NSPLIT-1}")
    e.ins("s_cbranch_scc1 " + ("L_stamp" if stamp else "L_part_end"), 'other')
    e.salu(f"s_mul_i32 s{sTMP}, s{sBH}, {NSPLIT*2048}")
    e.salu(f"s_mul_i32 s{sTMP2}, s{sBH}, {NSPLIT*16}")
    e.salu(f"s_add_u32 s{sTMP2}, s{sTMP2}, 0x400000")
    for sp in range(NSPLIT):
        e.ins(f"buffer_load_dwordx2 {vr(mlb+2*sp,2)}, v{vX+1}, {sr(sWS,4)}, s{sTMP2} offen offset:{16*sp} sc1", 'vmem', wr=vr(mlb + 2 * sp, 2), rd=v(vX + 1))
    for sp in range(NSPLIT):
        e.ins(f"buffer_load_dwordx4 {vr(ob+8*sp,4)}, v{vX}, {sr(sWS,4)}, s{sTMP} offen offset:{(sp%2)*2048} sc1", 'vmem', wr=vr(ob + 8 * sp, 4), rd=v(vX))
        e.ins(f"buffer_load_dwordx4 {vr(ob+8*sp+4,4)}, v{vX}, {sr(sWS,4)}, s{sTMP} offen offset:{(sp%2)*2048+16} sc1", 'vmem', wr=vr(ob + 8 * sp + 4, 4), rd=v(vX))
        if sp % 2 == 1:
            e.salu(f"s_add_u32 s{sTMP}, s{sTMP}, 4096")
    e.salu(f"s_mov_b32 s{S_T}, s18")
    e.salu(f"s_and_b32 s{S_T+1}, s19, 0xffff")
    e.salu(f"s_mov_b32 s{S_T+2}, {8*16*256*2}")
    e.salu(f"s_mov_b32 s{S_T+3}, 0x00020000")
    e.salu(f"s_lshl_b32 s{sTMP2}, s{sBH}, 10")
    e.valu("v_lshlrev_b32", v(vX + 1), 4, v(vLANE))
    e.wait(vm=0)
    combine(NSPLIT, mlb, ob, vACC)
    e.valu("v_rcp_f32", v(vL), v(vL), kind='trans')
    for c in range(8):
        e.valu("v_mul_f32", v(vACC + c), v(vACC + c), v(vL))
    for c in range(4):
        e.valu("v_cvt_pk_bf16_f32", v(vB + c), v(vACC + 2 * c), v(vACC + 2 * c + 1))
    e.ins(f"buffer_store_dwordx4 {vr(vB,4)}, v{vX+1}, {sr(S_T,4)}, s{sTMP2} offen", 'vstore', rd=[vr(vB, 4), v(vX + 1)], data=vr(vB, 4))
    if stamp:
        e.raw("""L_stamp:
    s_waitcnt vmcnt(0)
    s_memrealtime s[70:71]
    s_mov_b32 exec_lo, 1
    s_mov_b32 exec_hi, 0
    s_getreg_b32 s72, hwreg(HW_REG_XCC_ID)
    s_waitcnt lgkmcnt(0)
    s_sub_u32 s73, s70, s74
    v_mov_b32 v8, s70
    v_mov_b32 v9, s68
    v_mov_b32 v10, s72
    v_mov_b32 v11, s73
    v_mov_b32 v12, 0
    s_lshl_b32 s40, s2, 4
    s_add_u32 s40, s40, 0x800000
    s_nop 4
    buffer_store_dwordx4 v[8:11], v12, s[52:55], s40 offen
    s_waitcnt vmcnt(0)""")
    e.label("L_part_end")
    e.ins("s_endpgm", 'other')

    nv_alloc = ((NV + 7) // 8) * 8
    hdr = open("cdna_kernels/" + NAME + ".s.ref").read().split("; @launch")[0]
    out = hdr
    out += f"; @launch grid=({NWG},1,1) block=({NW*64},1,1) lds={LDS}\n"
    out += f"; params: D={D} flags={flags} exact_int={exact_int} pk={pk}\n"
    out += '.amdgcn_target "amdgcn-amd-amdhsa--gfx950"\n.text\n'
    out += "\n".join(e.lines) + "\n"
    out += f""".section .rodata,"a"
.p2align 6
.amdhsa_kernel {kname}
  .amdhsa_next_free_vgpr {nv_alloc}
  .amdhsa_next_free_sgpr {80 if stamp else 72}
  .amdhsa_accum_offset {nv_alloc}
  .amdhsa_group_segment_fixed_size 0
  .amdhsa_kernarg_size 80
  .amdhsa_user_sgpr_count 2
  .amdhsa_user_sgpr_kernarg_segment_ptr 1
  .amdhsa_system_sgpr_workgroup_id_x 1
  .amdhsa_float_denorm_mode_32 3
.end_amdhsa_kernel
"""
    return out


if __name__ == "__main__":
    ap = argparse.ArgumentParser()
    ap.add_argument("--d", type=int, default=16)
    ap.add_argument("--flags", default="nt")
    ap.add_argument("--noexact", action="store_true")
    ap.add_argument("--nopk", action="store_true")
    ap.add_argument("--stamp", action="store_true")
    ap.add_argument("-o", default="cdna_kernels/" + NAME + ".s")
    a = ap.parse_args()
    s = gen(a.d, a.flags, not a.noexact, not a.nopk, a.stamp)
    open(a.o, "w").write(s)
```

```python
import sys, argparse, math, struct
from gen import Em, regs, NAME


class Em2(Em):
    def __init__(self):
        super().__init__()
        self.vq = []

    def vissue(self, tag):
        self.vq.append(tag)

    def vwait(self, tag):
        idx = max(i for i, t in enumerate(self.vq) if t == tag)
        n = len(self.vq) - 1 - idx
        assert n <= 63
        self.wait(vm=n)
        self.vq = self.vq[idx + 1:]

    def vwait_all(self):
        self.wait(vm=0)
        self.vq = []


def gen(D=4, flags="nt", exact_int=True, pk=True, stamp=False, DEP=3, XT=0):
    assert DEP <= D and DEP + XT <= D
    NW, TPW, CHK = 8, 128, 4
    RPG = 128 // NW
    KD = max(1, DEP // RPG)
    assert D in (4, 8, 16, 32)
    BODY = max(D, RPG)
    JUMP = NW * CHK * 1024
    TPG = NW * TPW
    NSPLIT = 4096 // TPG
    NWG = 64 * NSPLIT
    NG = TPW // RPG
    NITER = TPW // BODY
    WREG = 2048
    LDS = NW * WREG + NW * 16
    ML_OFF = NW * WREG
    NT = 4
    P_OFF, Z_OFF = 1024, 1536
    C_EXP = 0.0625 * 1.4426950408889634
    cexp_hex = "0x%08x" % struct.unpack('<I', struct.pack('<f', C_EXP))[0]

    S_K, S_V, S_T = 24, 28, 32
    sBH, sSPLIT, sWAVE, sROW, sTMP, sTMP2, sLOOP, sLANE = 36, 37, 38, 39, 40, 41, 42, 43
    sZ, sS = 44, 46
    sRA, sRB = 48, 49
    sCEXP, sPRE = 50, 51
    sWS = 52
    sWGROW, sSCO = 58, 59
    S_KS, S_KZ = 60, 64
    vTID, vOFF, vLANE, vZ, vS, vLA, vAA, vL8 = 0, 1, 2, 3, 4, 5, 6, 7
    vT = 8
    vKZ, vKS, vQ = 24, 28, 32
    vM, vL, vX = 36, 37, 38
    vA = 40
    vB = 44
    vACC = 60
    vSC1 = 76
    vRING = 80
    NV = vRING + max(4 * D, 64)

    e = Em2()
    R = lambda i: vRING + 4 * (i % D)
    v = lambda i: f"v{i}"
    vr = lambda a, n: f"v[{a}:{a+n-1}]"
    sr = lambda a, n: f"s[{a}:{a+n-1}]"
    SCB = [vA, vSC1]

    kname = NAME + "_kernel"
    e.raw(f".globl {kname}")
    e.raw(".p2align 8")
    e.raw(f".type {kname},@function")
    e.label(kname)
    e.salu(f"s_cmp_ge_u32 s2, {NWG}", rd='s2')
    e.ins("s_cbranch_scc1 L_part_end", 'other')
    if stamp:
        e.salu("s_memrealtime s[68:69]")
    e.salu("s_load_dwordx16 s[4:19], s[0:1], 0", wr='s[4:19]')
    e.salu("s_load_dwordx4 s[20:23], s[0:1], 64", wr='s[20:23]')
    e.valu("v_and_b32", v(vLANE), 63, v(vTID))
    e.valu("v_lshrrev_b32", v(vX), 6, v(vTID))
    e.valu("v_lshlrev_b32", v(vOFF), 4, v(vLANE))
    e.ins(f"v_readfirstlane_b32 s{sWAVE}, v{vX}", 'readlane', wr=f"s{sWAVE}", rd=v(vX))
    e.valu("v_lshlrev_b32", v(vL8), 3, v(vLANE))
    e.salu(f"s_lshr_b32 s{sBH}, s2, 2", wr=f"s{sBH}")
    e.salu(f"s_lshl_b32 s{sWGROW}, s2, 10")
    e.salu(f"s_mov_b32 s{S_K+2}, 0x10000000")
    e.salu(f"s_mov_b32 s{S_K+3}, 0x00020000")
    e.salu(f"s_lshl_b32 s{sTMP2}, s{sWAVE}, 2")
    e.salu(f"s_add_u32 s{sROW}, s{sWGROW}, s{sTMP2}")
    e.salu(f"s_lshl_b32 s{sPRE}, s{sROW}, 10")
    e.salu(f"s_lshl_b32 s{sSCO}, s2, 12")
    e.salu(f"s_mov_b32 s{S_KS+2}, {8 * 8 * 32 * 256 * 2}")
    e.salu(f"s_mov_b32 s{S_KS+3}, 0x00020000")
    e.salu(f"s_mov_b32 s{S_KZ+2}, {8 * 8 * 32 * 256 * 2}")
    e.salu(f"s_mov_b32 s{S_KZ+3}, 0x00020000")
    e.wait(lgkm=0)
    e.salu(f"s_mov_b32 s{S_K}, s6")
    e.salu(f"s_and_b32 s{S_K+1}, s7, 0xffff")
    e.salu(f"s_mov_b32 s{S_KS}, s10")
    e.salu(f"s_and_b32 s{S_KS+1}, s11, 0xffff")
    e.salu(f"s_mov_b32 s{S_KZ}, s12")
    e.salu(f"s_and_b32 s{S_KZ+1}, s13, 0xffff")

    fl = (" " + flags) if flags else ""

    def load_row(i, srd):
        e.ins(f"buffer_load_dwordx4 {vr(R(i),4)}, v{vOFF}, {sr(srd,4)}, s{sPRE} offen offset:{(i%4)*1024}{fl}",
              'vmem', wr=vr(R(i), 4), rd=[v(vOFF), sr(srd, 4), f"s{sPRE}"])
        e.vissue(('R', i % D))
        if i % 4 == 3:
            e.salu(f"s_add_u32 s{sPRE}, s{sPRE}, {JUMP}", wr=f"s{sPRE}")

    def load_scales(b):
        e.ins(f"buffer_load_dwordx2 {vr(SCB[b],2)}, v{vL8}, {sr(S_KS,4)}, s{sSCO} offen", 'vmem', wr=vr(SCB[b], 2), rd=v(vL8))
        e.vissue(('s', b))
        e.ins(f"buffer_load_dwordx2 {vr(SCB[b]+2,2)}, v{vL8}, {sr(S_KZ,4)}, s{sSCO} offen", 'vmem', wr=vr(SCB[b] + 2, 2), rd=v(vL8))
        e.vissue(('S', b))
        e.salu(f"s_add_u32 s{sSCO}, s{sSCO}, 512", wr=f"s{sSCO}")

    def unpack_scales(b):
        for (d, src) in ((vKS, SCB[b]), (vKZ, SCB[b] + 2)):
            e.valu("v_lshlrev_b32", v(d), 16, v(src))
            e.valu("v_and_b32", v(d + 1), "0xffff0000", v(src))
            e.valu("v_lshlrev_b32", v(d + 2), 16, v(src + 1))
            e.valu("v_and_b32", v(d + 3), "0xffff0000", v(src + 1))

    def small_srd(p, nbytes):
        e.salu(f"s_mov_b32 s{S_T}, s{p}")
        e.salu(f"s_and_b32 s{S_T+1}, s{p+1}, 0xffff")
        e.salu(f"s_mov_b32 s{S_T+2}, {nbytes}")
        e.salu(f"s_mov_b32 s{S_T+3}, 0x00020000")

    def small_loads():
        small_srd(4, 8 * 16 * 256 * 2)
        e.salu(f"s_lshl_b32 s{sTMP2}, s{sBH}, 10")
        e.ins(f"buffer_load_dwordx2 {vr(vQ,2)}, v{vL8}, {sr(S_T,4)}, s{sTMP2} offen", 'vmem', wr=vr(vQ, 2), rd=v(vL8))
        e.vissue('q0')
        e.ins(f"buffer_load_dwordx2 {vr(vQ+2,2)}, v{vL8}, {sr(S_T,4)}, s{sTMP2} offen offset:512", 'vmem', wr=vr(vQ + 2, 2), rd=v(vL8))
        e.vissue('q')

    def vscale_loads():
        e.valu("v_lshrrev_b32", v(vT), 1, v(vLANE))
        e.valu("v_mul_u32_u24", v(vT), NW * CHK * 2, v(vT))
        e.valu("v_and_b32", v(vT + 1), 1, v(vLANE))
        e.valu("v_lshl_add_u32", v(vT), v(vT + 1), 2, v(vT))
        e.salu(f"s_lshl_b32 s{sTMP2}, s{sROW}, 1")
        small_srd(14, 8 * 8 * 4096 * 2)
        e.ins(f"buffer_load_dword v{vS}, v{vT}, {sr(S_T,4)}, s{sTMP2} offen", 'vmem', wr=v(vS), rd=v(vT))
        e.vissue('vs')
        small_srd(16, 8 * 8 * 4096 * 2)
        e.ins(f"buffer_load_dword v{vZ}, v{vT}, {sr(S_T,4)}, s{sTMP2} offen", 'vmem', wr=v(vZ), rd=v(vT))
        e.vissue('vz')

    small_loads()
    for g in range(KD):
        load_scales(g % 2)
        for i in range(min(RPG, DEP)):
            load_row(g * RPG + i, S_K)

    e.salu(f"s_mov_b32 s{S_V}, s8")
    e.salu(f"s_and_b32 s{S_V+1}, s9, 0xffff")
    e.salu(f"s_mov_b32 s{S_V+2}, 0x10000000")
    e.salu(f"s_mov_b32 s{S_V+3}, 0x00020000")
    e.salu(f"s_mov_b32 s{sWS}, s22")
    e.salu(f"s_and_b32 s{sWS+1}, s23, 0xffff")
    e.salu(f"s_mov_b32 s{sWS+2}, 0x40000000")
    e.salu(f"s_mov_b32 s{sWS+3}, 0x00020000")
    e.salu(f"s_mov_b32 s{sCEXP}, {cexp_hex}")

    e.salu(f"s_lshl_b32 s{sTMP}, s{sWAVE}, 11")
    e.valu("v_lshrrev_b32", v(vT), 5, v(vLANE))
    e.valu("v_lshlrev_b32", v(vLA), 9, v(vT))
    e.valu("v_bfe_u32", v(vT), v(vLANE), 4, 1)
    e.valu("v_lshl_add_u32", v(vLA), v(vT), 2, v(vLA))
    e.valu("v_bfe_u32", v(vT), v(vLANE), 3, 1)
    e.valu("v_lshl_add_u32", v(vLA), v(vT), 3, v(vLA))
    e.valu("v_bfe_u32", v(vT), v(vLANE), 2, 1)
    e.valu("v_lshl_add_u32", v(vLA), v(vT), 4, v(vLA))
    e.valu("v_add_u32", v(vLA), f"s{sTMP}", v(vLA))
    e.valu("v_and_b32", v(vT), 15, v(vLANE))
    e.valu("v_lshrrev_b32", v(vT + 1), 1, v(vT))
    e.valu("v_lshrrev_b32", v(vT + 2), 4, v(vLANE))
    e.ins(f"v_cmp_eq_u32 vcc, v{vT+1}, v{vT+2}", 'valu', wr='vcc', rd=[v(vT + 1), v(vT + 2)])
    e.valu("v_and_b32", v(vT + 3), 1, v(vLANE))
    e.valu("v_lshlrev_b32", v(vT + 3), 8, v(vT + 3))
    e.valu("v_add_u32", v(vT + 3), P_OFF, v(vT + 3))
    e.valu("v_mov_b32", v(vT + 4), Z_OFF)
    e.ins(f"v_cndmask_b32 v{vAA}, v{vT+4}, v{vT+3}, vcc", 'valu', wr=v(vAA), rd=[v(vT + 4), v(vT + 3), 'vcc'])
    e.valu("v_add_u32", v(vAA), f"s{sTMP}", v(vAA))
    e.valu("v_lshlrev_b32", v(vT), 2, v(vLANE))
    e.valu("v_add_u32", v(vT), f"s{sTMP}", v(vT))
    e.valu("v_mov_b32", v(vT + 1), 0)
    e.ins(f"ds_write_b32 v{vT}, v{vT+1} offset:{Z_OFF}", 'ds', rd=[v(vT), v(vT + 1)])
    for i in range(16):
        e.valu("v_mov_b32", v(vACC + i), 0)

    def perm(op, a, b):
        e.ins(f"{op} v{a}, v{b}", 'perm', wr=[v(a), v(b)], rd=[v(a), v(b)])

    def dpp(op, d, s0, s1, ctl):
        e.ins(f"{op}_dpp v{d}, v{s0}, v{s1} {ctl}", 'dpp', wr=v(d), rd=[v(s0)])

    def pkop(op, d, a, b, mods=""):
        e.ins(f"{op} {vr(d,2)}, {vr(a,2)}, {b} {mods}".rstrip(), 'valu', wr=vr(d, 2), rd=[vr(a, 2), b])

    def k_row(i, j, srd_next):
        r = R(i)
        t = vT + 4 * (j % 2)
        kk = vT + 8 + 2 * (j % 2)
        a0, a1 = vB + 2 * j, vB + 2 * j + 1
        e.vwait(('R', i % D))
        if DEP < D:
            load_row(i + DEP, srd_next)
        for c in range(4):
            e.valu("v_cvt_f32_i32", v(t + c), v(r + c))
        if DEP == D:
            load_row(i + DEP, srd_next)
        if exact_int:
            for c in range(4):
                e.valu("v_cvt_pk_bf16_f32", v(t + c), 0, v(t + c))
        if pk:
            for c in (0, 2):
                pkop("v_pk_add_f32", t + c, t + c, vr(vKZ + c, 2), "neg_lo:[0,1] neg_hi:[0,1]")
        else:
            for c in range(4):
                e.valu("v_sub_f32", v(t + c), v(t + c), v(vKZ + c))
        for c in range(4):
            e.valu("v_cvt_pk_bf16_f32", v(t + c), 0, v(t + c))
        if pk:
            for c in (0, 2):
                pkop("v_pk_mul_f32", t + c, t + c, vr(vKS + c, 2))
        else:
            for c in range(4):
                e.valu("v_mul_f32", v(t + c), v(t + c), v(vKS + c))
        e.valu("v_cvt_pk_bf16_f32", v(kk), v(t), v(t + 1))
        e.valu("v_cvt_pk_bf16_f32", v(kk + 1), v(t + 2), v(t + 3))
        for (acc, k_, q_, first) in ((a0, kk, vQ, True), (a1, kk, vQ + 2, True), (a0, kk + 1, vQ + 1, False), (a1, kk + 1, vQ + 3, False)):
            c_ = "0" if first else v(acc)
            e.ins(f"v_dot2_f32_bf16 v{acc}, v{k_}, v{q_}, {c_}", 'dot', wr=v(acc),
                  rd=[v(k_), v(q_)] + ([] if first else [v(acc)]), ab=[v(k_), v(q_)])

    def k_reduce(lds_off):
        for j in range(8):
            perm("v_permlane32_swap_b32", vB + 2 * j, vB + 2 * j + 1)
        for j in range(8):
            e.valu("v_add_f32", v(vB + 2 * j), v(vB + 2 * j), v(vB + 2 * j + 1))
        for j in range(4):
            perm("v_permlane16_swap_b32", vB + 4 * j, vB + 4 * j + 2)
        for j in range(4):
            e.valu("v_add_f32", v(vB + 4 * j), v(vB + 4 * j), v(vB + 4 * j + 2))
        for j in range(2):
            X, Y = vB + 8 * j, vB + 8 * j + 4
            dpp("v_add_f32", X, X, X, "row_ror:8 row_mask:0xf bank_mask:0x3")
            dpp("v_add_f32", X, Y, Y, "row_ror:8 row_mask:0xf bank_mask:0xc")
        X, Y = vB, vB + 8
        dpp("v_add_f32", X, X, X, "row_shl:4 row_mask:0xf bank_mask:0x5")
        dpp("v_add_f32", X, Y, Y, "row_shr:4 row_mask:0xf bank_mask:0xa")
        dpp("v_add_f32", X, X, X, "quad_perm:[1,0,3,2] row_mask:0xf bank_mask:0xf")
        dpp("v_add_f32", X, X, X, "quad_perm:[2,3,0,1] row_mask:0xf bank_mask:0xf")
        e.ins(f"ds_write_b32 v{vLA}, v{X} offset:{lds_off}", 'ds', rd=[v(vLA), v(X)])

    def k_iter(tail):
        for g in range(KD):
            b = g % 2
            e.vwait(('S', b))
            unpack_scales(b)
            if not tail:
                load_scales(b)
            elif g == 0:
                vscale_loads()
            for ii in range(RPG):
                i = g * RPG + ii
                if tail and i + DEP == BODY:
                    e.salu(f"s_lshl_b32 s{sPRE}, s{sROW}, 10", wr=f"s{sPRE}")
                k_row(i, i % 8, S_V if (tail and i + DEP >= BODY) else S_K)
                if i % 8 == 7:
                    k_reduce((i // 8) * 32)

    e.salu(f"s_mov_b32 s{sLOOP}, {NITER-1}")
    e.fence(4)
    e.label("L_kloop")
    q0 = [t for t in e.vq if t not in ('q0', 'q')]
    k_iter(False)
    assert e.vq == q0[len(q0) - len(e.vq):], (e.vq, q0)
    e.vq = list(q0)
    e.valu("v_add_u32", v(vLA), BODY * 4, v(vLA))
    e.salu(f"s_sub_u32 s{sLOOP}, s{sLOOP}, 1")
    e.salu(f"s_cmp_lg_u32 s{sLOOP}, 0")
    e.fence(4)
    e.ins("s_cbranch_scc1 L_kloop", 'other')
    k_iter(True)

    e.salu(f"s_lshl_b32 s{sTMP}, s{sWAVE}, 11")
    e.valu("v_lshlrev_b32", v(vX), 4, v(vLANE))
    e.valu("v_add_u32", v(vX), f"s{sTMP}", v(vX))
    e.wait(lgkm=0)
    e.ins(f"ds_read_b128 {vr(vT,4)}, v{vX}", 'ds', wr=vr(vT, 4), rd=v(vX))
    e.wait(lgkm=0)
    for i in range(NT):
        e.valu("v_cvt_pk_bf16_f32", v(vT + i), 0, v(vT + i))
    e.valu("v_max_f32", v(vM), v(vT), v(vT + 1))
    e.valu("v_max3_f32", v(vM), v(vM), v(vT + 2), v(vT + 3))

    def allreduce32(op, reg, tmp):
        dpp(op, reg, reg, reg, "quad_perm:[1,0,3,2] row_mask:0xf bank_mask:0xf")
        dpp(op, reg, reg, reg, "quad_perm:[2,3,0,1] row_mask:0xf bank_mask:0xf")
        dpp(op, reg, reg, reg, "row_ror:4 row_mask:0xf bank_mask:0xf")
        dpp(op, reg, reg, reg, "row_ror:8 row_mask:0xf bank_mask:0xf")
        e.valu("v_mov_b32", v(tmp), v(reg))
        perm("v_permlane16_swap_b32", reg, tmp)
        e.valu(op, v(reg), v(reg), v(tmp))

    allreduce32("v_max_f32", vM, vX + 1)
    for i in range(NT):
        e.valu("v_sub_f32", v(vT + i), v(vT + i), v(vM))
    for i in range(NT):
        e.valu("v_mul_f32", v(vT + i), f"s{sCEXP}", v(vT + i))
    for i in range(NT):
        e.valu("v_exp_f32", v(vT + i), v(vT + i), kind='trans')
    e.valu("v_lshlrev_b32", v(vX), 3, v(vLANE))
    e.valu("v_add_u32", v(vX), f"s{sTMP}", v(vX))
    e.valu("v_cvt_pk_bf16_f32", v(vT + 4), v(vT), v(vT + 1))
    e.valu("v_cvt_pk_bf16_f32", v(vT + 5), v(vT + 2), v(vT + 3))
    e.ins(f"ds_write_b64 v{vX}, {vr(vT+4,2)} offset:{P_OFF}", 'ds', rd=[v(vX), vr(vT + 4, 2)])
    e.valu("v_add_f32", v(vL), v(vT), v(vT + 1))
    e.valu("v_add_f32", v(vT + 2), v(vT + 2), v(vT + 3))
    e.valu("v_add_f32", v(vL), v(vL), v(vT + 2))
    allreduce32("v_add_f32", vL, vX + 1)
    if 'vz' in e.vq:
        e.vwait('vz')
    e.wait(lgkm=0)

    e.salu(f"s_mov_b32 s{sLANE}, 0", wr=f"s{sLANE}")

    def v_iter(last):
        for i in range(BODY):
            j = i % 8
            r = R(i)
            t = vT + 4 * (j % 2)
            if j == 0:
                e.ins(f"ds_read_b128 {vr(vA,4)}, v{vAA} offset:{(i//8)*16}", 'ds', wr=vr(vA, 4), rd=v(vAA))
            if j % 2 == 0:
                e.ins(f"v_readlane_b32 s{sRA}, v{vZ}, s{sLANE}", 'readlane', wr=f"s{sRA}", rd=[v(vZ), f"s{sLANE}"], lanesel=f"s{sLANE}")
                e.ins(f"v_readlane_b32 s{sRB}, v{vS}, s{sLANE}", 'readlane', wr=f"s{sRB}", rd=[v(vS), f"s{sLANE}"], lanesel=f"s{sLANE}")
                e.salu(f"s_add_u32 s{sLANE}, s{sLANE}, 1", wr=f"s{sLANE}")
                e.nop(1)
                e.salu(f"s_lshl_b32 s{sZ}, s{sRA}, 16", wr=f"s{sZ}")
                e.salu(f"s_and_b32 s{sZ+1}, s{sRA}, 0xffff0000", wr=f"s{sZ+1}")
                e.salu(f"s_lshl_b32 s{sS}, s{sRB}, 16", wr=f"s{sS}")
                e.salu(f"s_and_b32 s{sS+1}, s{sRB}, 0xffff0000", wr=f"s{sS+1}")
            hi = j % 2
            e.vwait(('R', i % D))
            do_load = not (last and i + DEP >= BODY)
            if DEP < D and do_load:
                load_row(i + DEP, S_V)
            for c in range(4):
                e.valu("v_cvt_f32_i32", v(t + c), v(r + c))
            if DEP == D and do_load:
                load_row(i + DEP, S_V)
            if exact_int:
                for c in range(4):
                    e.valu("v_cvt_pk_bf16_f32", v(t + c), 0, v(t + c))
            sel = f"op_sel:[0,{hi}] op_sel_hi:[1,{hi}]"
            if pk:
                for c in (0, 2):
                    pkop("v_pk_add_f32", t + c, t + c, sr(sZ, 2), sel + " neg_lo:[0,1] neg_hi:[0,1]")
            else:
                for c in range(4):
                    e.valu("v_subrev_f32", v(t + c), f"s{sZ+hi}", v(t + c))
            for c in range(4):
                e.valu("v_cvt_pk_bf16_f32", v(t + c), 0, v(t + c))
            if pk:
                for c in (0, 2):
                    pkop("v_pk_mul_f32", t + c, t + c, sr(sS, 2), sel)
            else:
                for c in range(4):
                    e.valu("v_mul_f32", v(t + c), f"s{sS+hi}", v(t + c))
            if j % 2 == 1:
                for c in range(4):
                    e.valu("v_cvt_pk_bf16_f32", v(vB + 4 * c + j // 2), v(vT + c), v(vT + 4 + c))
            if j == 7:
                e.wait(lgkm=0)
                for c in range(4):
                    acc = vr(vACC + 4 * c, 4)
                    e.ins(f"v_mfma_f32_16x16x32_bf16 {acc}, {vr(vA,4)}, {vr(vB+4*c,4)}, {acc}", 'mfma',
                          wr=acc, rd=[vr(vA, 4), vr(vB + 4 * c, 4), acc], ab=[vr(vA, 4), vr(vB + 4 * c, 4)], c=acc)

    e.salu(f"s_mov_b32 s{sLOOP}, {NITER-1}")
    e.fence(4)
    e.label("L_vloop")
    q0 = list(e.vq)
    v_iter(False)
    assert e.vq == q0, (e.vq, q0)
    e.valu("v_add_u32", v(vAA), BODY * 2, v(vAA))
    e.salu(f"s_sub_u32 s{sLOOP}, s{sLOOP}, 1")
    e.salu(f"s_cmp_lg_u32 s{sLOOP}, 0")
    e.fence(4)
    e.ins("s_cbranch_scc1 L_vloop", 'other')
    v_iter(True)

    e.valu("v_lshrrev_b32", v(vT), 4, v(vLANE))
    e.valu("v_lshlrev_b32", v(vT), 9, v(vT))
    e.valu("v_and_b32", v(vT + 1), 15, v(vLANE))
    e.valu("v_lshl_add_u32", v(vT), v(vT + 1), 4, v(vT))
    e.valu("v_add_u32", v(vT), f"s{sTMP}", v(vT))
    e.valu("v_lshrrev_b32", v(vT + 1), 5, v(vLANE))
    e.valu("v_lshlrev_b32", v(vT + 1), 3, v(vT + 1))
    e.salu(f"s_lshl_b32 s{sTMP2}, s{sWAVE}, 4")
    e.valu("v_add_u32", v(vT + 1), f"s{sTMP2}", v(vT + 1))
    e.ins(f"ds_write_b64 v{vT+1}, {vr(vM,2)} offset:{ML_OFF}", 'ds', rd=[v(vT + 1), vr(vM, 2)])
    for u in range(2):
        for h in range(2):
            q = vB + 4 * (2 * u + h)
            for c in range(4):
                e.valu("v_mov_b32", v(q + c), v(vACC + 4 * c + 2 * u + h))
    e.salu("s_mov_b32 exec_hi, 0")
    for u in range(2):
        for h in range(2):
            q = vB + 4 * (2 * u + h)
            e.ins(f"ds_write_b128 v{vT}, {vr(q,4)} offset:{h*1024+u*256}", 'ds', rd=[v(vT), vr(q, 4)])
    e.salu("s_mov_b64 exec, -1")
    e.wait(lgkm=0)
    e.ins("s_barrier", 'other')
    if stamp:
        e.salu("s_memrealtime s[74:75]")
    e.salu(f"s_cmp_lg_u32 s{sWAVE}, 0")
    e.ins("s_cbranch_scc1 L_part_end", 'other')
    e.valu("v_lshlrev_b32", v(vX), 5, v(vLANE))
    e.valu("v_lshrrev_b32", v(vT), 5, v(vLANE))
    e.valu("v_lshlrev_b32", v(vX + 1), 3, v(vT))
    mlb = vT
    ob = vRING
    for w in range(NW):
        e.ins(f"ds_read_b64 {vr(mlb+2*w,2)}, v{vX+1} offset:{ML_OFF+16*w}", 'ds', wr=vr(mlb + 2 * w, 2), rd=v(vX + 1))
    for w in range(NW):
        e.ins(f"ds_read_b128 {vr(ob+8*w,4)}, v{vX} offset:{WREG*w}", 'ds', wr=vr(ob + 8 * w, 4), rd=v(vX))
        e.ins(f"ds_read_b128 {vr(ob+8*w+4,4)}, v{vX} offset:{WREG*w+16}", 'ds', wr=vr(ob + 8 * w + 4, 4), rd=v(vX))
    e.wait(lgkm=0)

    def combine(n, mlb, ob, acc):
        e.valu("v_mov_b32", v(vM), v(mlb))
        for w in range(1, n):
            e.valu("v_max_f32", v(vM), v(vM), v(mlb + 2 * w))
        for w in range(n):
            e.valu("v_sub_f32", v(mlb + 2 * w), v(mlb + 2 * w), v(vM))
        for w in range(n):
            e.valu("v_mul_f32", v(mlb + 2 * w), f"s{sCEXP}", v(mlb + 2 * w))
        for w in range(n):
            e.valu("v_exp_f32", v(mlb + 2 * w), v(mlb + 2 * w), kind='trans')
        e.valu("v_mul_f32", v(vL), v(mlb), v(mlb + 1))
        for c in range(8):
            e.valu("v_mul_f32", v(acc + c), v(mlb), v(ob + c))
        for w in range(1, n):
            e.valu("v_fmac_f32", v(vL), v(mlb + 2 * w), v(mlb + 2 * w + 1))
            for c in range(8):
                e.valu("v_fmac_f32", v(acc + c), v(mlb + 2 * w), v(ob + 8 * w + c))

    combine(NW, mlb, ob, vACC)
    e.salu(f"s_lshl_b32 s{sTMP2}, s2, 11")
    e.ins(f"buffer_store_dwordx4 {vr(vACC,4)}, v{vX}, {sr(sWS,4)}, s{sTMP2} offen sc1", 'vstore', rd=[vr(vACC, 4), v(vX)], data=vr(vACC, 4))
    e.ins(f"buffer_store_dwordx4 {vr(vACC+4,4)}, v{vX}, {sr(sWS,4)}, s{sTMP2} offen offset:16 sc1", 'vstore', rd=[vr(vACC + 4, 4), v(vX)], data=vr(vACC + 4, 4))
    e.salu(f"s_lshl_b32 s{sTMP2}, s2, 4")
    e.salu(f"s_add_u32 s{sTMP2}, s{sTMP2}, 0x400000")
    e.salu("s_mov_b32 exec_lo, 1")
    e.salu("s_mov_b32 exec_hi, 1")
    e.ins(f"buffer_store_dwordx2 {vr(vM,2)}, v{vX+1}, {sr(sWS,4)}, s{sTMP2} offen sc1", 'vstore', rd=[vr(vM, 2), v(vX + 1)])
    e.salu(f"s_mov_b32 s{S_T}, s20")
    e.salu(f"s_and_b32 s{S_T+1}, s21, 0xffff")
    e.salu(f"s_mov_b32 s{S_T+2}, 256")
    e.salu(f"s_mov_b32 s{S_T+3}, 0x00020000")
    e.salu(f"s_lshl_b32 s{sTMP2}, s{sBH}, 2")
    e.valu("v_mov_b32", v(vT), 1)
    e.valu("v_mov_b32", v(vT + 1), 0)
    e.salu("s_mov_b32 exec_hi, 0")
    e.wait(vm=0)
    e.ins(f"buffer_atomic_add v{vT}, v{vT+1}, {sr(S_T,4)}, s{sTMP2} offen sc0 sc1", 'vmem', wr=v(vT), rd=[v(vT), v(vT + 1)])
    e.wait(vm=0)
    e.ins(f"v_readfirstlane_b32 s{sTMP}, v{vT}", 'readlane', wr=f"s{sTMP}", rd=v(vT))
    e.salu("s_mov_b64 exec, -1")
    e.nop(2)
    e.salu(f"s_cmp_lg_u32 s{sTMP}, {NSPLIT-1}")
    e.ins("s_cbranch_scc1 " + ("L_stamp" if stamp else "L_part_end"), 'other')
    e.salu(f"s_mul_i32 s{sTMP}, s{sBH}, {NSPLIT*2048}")
    e.salu(f"s_mul_i32 s{sTMP2}, s{sBH}, {NSPLIT*16}")
    e.salu(f"s_add_u32 s{sTMP2}, s{sTMP2}, 0x400000")
    for sp in range(NSPLIT):
        e.ins(f"buffer_load_dwordx2 {vr(mlb+2*sp,2)}, v{vX+1}, {sr(sWS,4)}, s{sTMP2} offen offset:{16*sp} sc1", 'vmem', wr=vr(mlb + 2 * sp, 2), rd=v(vX + 1))
    for sp in range(NSPLIT):
        e.ins(f"buffer_load_dwordx4 {vr(ob+8*sp,4)}, v{vX}, {sr(sWS,4)}, s{sTMP} offen offset:{(sp%2)*2048} sc1", 'vmem', wr=vr(ob + 8 * sp, 4), rd=v(vX))
        e.ins(f"buffer_load_dwordx4 {vr(ob+8*sp+4,4)}, v{vX}, {sr(sWS,4)}, s{sTMP} offen offset:{(sp%2)*2048+16} sc1", 'vmem', wr=vr(ob + 8 * sp + 4, 4), rd=v(vX))
        if sp % 2 == 1:
            e.salu(f"s_add_u32 s{sTMP}, s{sTMP}, 4096")
    e.salu(f"s_mov_b32 s{S_T}, s18")
    e.salu(f"s_and_b32 s{S_T+1}, s19, 0xffff")
    e.salu(f"s_mov_b32 s{S_T+2}, {8*16*256*2}")
    e.salu(f"s_mov_b32 s{S_T+3}, 0x00020000")
    e.salu(f"s_lshl_b32 s{sTMP2}, s{sBH}, 10")
    e.valu("v_lshlrev_b32", v(vX + 1), 4, v(vLANE))
    e.wait(vm=0)
    combine(NSPLIT, mlb, ob, vACC)
    e.valu("v_rcp_f32", v(vL), v(vL), kind='trans')
    for c in range(8):
        e.valu("v_mul_f32", v(vACC + c), v(vACC + c), v(vL))
    for c in range(4):
        e.valu("v_cvt_pk_bf16_f32", v(vB + c), v(vACC + 2 * c), v(vACC + 2 * c + 1))
    e.ins(f"buffer_store_dwordx4 {vr(vB,4)}, v{vX+1}, {sr(S_T,4)}, s{sTMP2} offen", 'vstore', rd=[vr(vB, 4), v(vX + 1)], data=vr(vB, 4))
    if stamp:
        e.raw("""L_stamp:
    s_waitcnt vmcnt(0)
    s_memrealtime s[70:71]
    s_mov_b32 exec_lo, 1
    s_mov_b32 exec_hi, 0
    s_getreg_b32 s72, hwreg(HW_REG_XCC_ID)
    s_waitcnt lgkmcnt(0)
    s_sub_u32 s73, s70, s74
    v_mov_b32 v8, s70
    v_mov_b32 v9, s68
    v_mov_b32 v10, s72
    v_mov_b32 v11, s73
    v_mov_b32 v12, 0
    s_lshl_b32 s40, s2, 4
    s_add_u32 s40, s40, 0x800000
    s_nop 4
    buffer_store_dwordx4 v[8:11], v12, s[52:55], s40 offen
    s_waitcnt vmcnt(0)""")
    e.label("L_part_end")
    e.ins("s_endpgm", 'other')

    nv_alloc = ((NV + 7) // 8) * 8
    hdr = open("cdna_kernels/" + NAME + ".s.ref").read().split("; @launch")[0]
    out = hdr
    out += f"; @launch grid=({NWG},1,1) block=({NW*64},1,1) lds={LDS}\n"
    out += f"; params: D={D} DEP={DEP} flags={flags} exact_int={exact_int} pk={pk}\n"
    out += '.amdgcn_target "amdgcn-amd-amdhsa--gfx950"\n.text\n'
    out += "\n".join(e.lines) + "\n"
    out += f""".section .rodata,"a"
.p2align 6
.amdhsa_kernel {kname}
  .amdhsa_next_free_vgpr {nv_alloc}
  .amdhsa_next_free_sgpr {80 if stamp else 72}
  .amdhsa_accum_offset {nv_alloc}
  .amdhsa_group_segment_fixed_size 0
  .amdhsa_kernarg_size 80
  .amdhsa_user_sgpr_count 2
  .amdhsa_user_sgpr_kernarg_segment_ptr 1
  .amdhsa_system_sgpr_workgroup_id_x 1
  .amdhsa_float_denorm_mode_32 3
.end_amdhsa_kernel
"""
    return out


if __name__ == "__main__":
    ap = argparse.ArgumentParser()
    ap.add_argument("--d", type=int, default=4)
    ap.add_argument("--dep", type=int, default=3)
    ap.add_argument("--flags", default="nt")
    ap.add_argument("--noexact", action="store_true")
    ap.add_argument("--nopk", action="store_true")
    ap.add_argument("--stamp", action="store_true")
    ap.add_argument("-o", default="cdna_kernels/" + NAME + ".s")
    a = ap.parse_args()
    s = gen(a.d, a.flags, not a.noexact, not a.nopk, a.stamp, a.dep)
    open(a.o, "w").write(s)
```

```python
import sys, argparse, math, struct
from gen import Em, regs, NAME


class Em2(Em):
    def __init__(self):
        super().__init__()
        self.vq = []

    def vissue(self, tag):
        self.vq.append(tag)

    def vwait(self, tag):
        idx = max(i for i, t in enumerate(self.vq) if t == tag)
        n = len(self.vq) - 1 - idx
        assert n <= 63
        self.wait(vm=n)
        self.vq = self.vq[idx + 1:]

    def vwait_all(self):
        self.wait(vm=0)
        self.vq = []


def gen(D=4, flags="nt", exact_int=True, pk=True, stamp=False, DEP=3, XT=0, POS=0):
    assert DEP <= D and DEP + XT <= D
    NW, TPW, CHK = 8, 128, 4
    RPG = 128 // NW
    KD = max(1, DEP // RPG)
    assert D in (4, 8, 16, 32)
    BODY = max(D, RPG)
    JUMP = NW * CHK * 1024
    TPG = NW * TPW
    NSPLIT = 4096 // TPG
    NWG = 64 * NSPLIT
    NG = TPW // RPG
    NITER = TPW // BODY
    WREG = 2048
    LDS = NW * WREG + NW * 16
    ML_OFF = NW * WREG
    NT = 4
    P_OFF, Z_OFF = 1024, 1536
    C_EXP = 0.0625 * 1.4426950408889634
    cexp_hex = "0x%08x" % struct.unpack('<I', struct.pack('<f', C_EXP))[0]

    S_K, S_V, S_T = 24, 28, 32
    sBH, sSPLIT, sWAVE, sROW, sTMP, sTMP2, sLOOP, sLANE = 36, 37, 38, 39, 40, 41, 42, 43
    sZ, sS = 44, 46
    sRA, sRB = 48, 49
    sCEXP, sPRE = 50, 51
    sWS = 52
    sWGROW, sSCO = 58, 59
    S_KS, S_KZ = 60, 64
    vTID, vOFF, vLANE, vZ, vS, vLA, vAA, vL8 = 0, 1, 2, 3, 4, 5, 6, 7
    vT = 8
    vKZ, vKS, vQ = 24, 28, 32
    vM, vL, vX = 36, 37, 38
    vA = 40
    vB = 44
    vACC = 60
    vSC1 = 76
    vRING = 80
    NV = vRING + max(4 * D, 64)

    e = Em2()
    R = lambda i: vRING + 4 * (i % D)
    v = lambda i: f"v{i}"
    vr = lambda a, n: f"v[{a}:{a+n-1}]"
    sr = lambda a, n: f"s[{a}:{a+n-1}]"
    SCB = [vA, vSC1]

    kname = NAME + "_kernel"
    e.raw(f".globl {kname}")
    e.raw(".p2align 8")
    e.raw(f".type {kname},@function")
    e.label(kname)
    e.salu(f"s_cmp_ge_u32 s2, {NWG}", rd='s2')
    e.ins("s_cbranch_scc1 L_part_end", 'other')
    if stamp:
        e.salu("s_memrealtime s[68:69]")
    e.salu("s_load_dwordx16 s[4:19], s[0:1], 0", wr='s[4:19]')
    e.salu("s_load_dwordx4 s[20:23], s[0:1], 64", wr='s[20:23]')
    e.valu("v_and_b32", v(vLANE), 63, v(vTID))
    e.valu("v_lshrrev_b32", v(vX), 6, v(vTID))
    e.valu("v_lshlrev_b32", v(vOFF), 4, v(vLANE))
    e.ins(f"v_readfirstlane_b32 s{sWAVE}, v{vX}", 'readlane', wr=f"s{sWAVE}", rd=v(vX))
    e.valu("v_lshlrev_b32", v(vL8), 3, v(vLANE))
    e.salu(f"s_lshr_b32 s{sBH}, s2, 2", wr=f"s{sBH}")
    e.salu(f"s_lshl_b32 s{sWGROW}, s2, 10")
    e.salu(f"s_mov_b32 s{S_K+2}, 0x10000000")
    e.salu(f"s_mov_b32 s{S_K+3}, 0x00020000")
    e.salu(f"s_lshl_b32 s{sTMP2}, s{sWAVE}, 2")
    e.salu(f"s_add_u32 s{sROW}, s{sWGROW}, s{sTMP2}")
    e.salu(f"s_lshl_b32 s{sPRE}, s{sROW}, 10")
    e.salu(f"s_lshl_b32 s{sSCO}, s2, 12")
    e.salu(f"s_mov_b32 s{S_KS+2}, {8 * 8 * 32 * 256 * 2}")
    e.salu(f"s_mov_b32 s{S_KS+3}, 0x00020000")
    e.salu(f"s_mov_b32 s{S_KZ+2}, {8 * 8 * 32 * 256 * 2}")
    e.salu(f"s_mov_b32 s{S_KZ+3}, 0x00020000")
    e.wait(lgkm=0)
    e.salu(f"s_mov_b32 s{S_K}, s6")
    e.salu(f"s_and_b32 s{S_K+1}, s7, 0xffff")
    e.salu(f"s_mov_b32 s{S_KS}, s10")
    e.salu(f"s_and_b32 s{S_KS+1}, s11, 0xffff")
    e.salu(f"s_mov_b32 s{S_KZ}, s12")
    e.salu(f"s_and_b32 s{S_KZ+1}, s13, 0xffff")

    fl = (" " + flags) if flags else ""

    def load_row(i, srd):
        e.ins(f"buffer_load_dwordx4 {vr(R(i),4)}, v{vOFF}, {sr(srd,4)}, s{sPRE} offen offset:{(i%4)*1024}{fl}",
              'vmem', wr=vr(R(i), 4), rd=[v(vOFF), sr(srd, 4), f"s{sPRE}"])
        e.vissue(('R', i % D))
        if i % 4 == 3:
            e.salu(f"s_add_u32 s{sPRE}, s{sPRE}, {JUMP}", wr=f"s{sPRE}")

    def load_scales(b):
        e.ins(f"buffer_load_dwordx2 {vr(SCB[b],2)}, v{vL8}, {sr(S_KS,4)}, s{sSCO} offen", 'vmem', wr=vr(SCB[b], 2), rd=v(vL8))
        e.vissue(('s', b))
        e.ins(f"buffer_load_dwordx2 {vr(SCB[b]+2,2)}, v{vL8}, {sr(S_KZ,4)}, s{sSCO} offen", 'vmem', wr=vr(SCB[b] + 2, 2), rd=v(vL8))
        e.vissue(('S', b))
        e.salu(f"s_add_u32 s{sSCO}, s{sSCO}, 512", wr=f"s{sSCO}")

    def unpack_scales(b):
        for (d, src) in ((vKS, SCB[b]), (vKZ, SCB[b] + 2)):
            e.valu("v_lshlrev_b32", v(d), 16, v(src))
            e.valu("v_and_b32", v(d + 1), "0xffff0000", v(src))
            e.valu("v_lshlrev_b32", v(d + 2), 16, v(src + 1))
            e.valu("v_and_b32", v(d + 3), "0xffff0000", v(src + 1))

    def small_srd(p, nbytes):
        e.salu(f"s_mov_b32 s{S_T}, s{p}")
        e.salu(f"s_and_b32 s{S_T+1}, s{p+1}, 0xffff")
        e.salu(f"s_mov_b32 s{S_T+2}, {nbytes}")
        e.salu(f"s_mov_b32 s{S_T+3}, 0x00020000")

    def small_loads():
        small_srd(4, 8 * 16 * 256 * 2)
        e.salu(f"s_lshl_b32 s{sTMP2}, s{sBH}, 10")
        e.ins(f"buffer_load_dwordx2 {vr(vQ,2)}, v{vL8}, {sr(S_T,4)}, s{sTMP2} offen", 'vmem', wr=vr(vQ, 2), rd=v(vL8))
        e.vissue('q0')
        e.ins(f"buffer_load_dwordx2 {vr(vQ+2,2)}, v{vL8}, {sr(S_T,4)}, s{sTMP2} offen offset:512", 'vmem', wr=vr(vQ + 2, 2), rd=v(vL8))
        e.vissue('q')

    def vscale_loads():
        e.valu("v_lshrrev_b32", v(vT), 1, v(vLANE))
        e.valu("v_mul_u32_u24", v(vT), NW * CHK * 2, v(vT))
        e.valu("v_and_b32", v(vT + 1), 1, v(vLANE))
        e.valu("v_lshl_add_u32", v(vT), v(vT + 1), 2, v(vT))
        e.salu(f"s_lshl_b32 s{sTMP2}, s{sROW}, 1")
        small_srd(14, 8 * 8 * 4096 * 2)
        e.ins(f"buffer_load_dword v{vS}, v{vT}, {sr(S_T,4)}, s{sTMP2} offen", 'vmem', wr=v(vS), rd=v(vT))
        e.vissue('vs')
        small_srd(16, 8 * 8 * 4096 * 2)
        e.ins(f"buffer_load_dword v{vZ}, v{vT}, {sr(S_T,4)}, s{sTMP2} offen", 'vmem', wr=v(vZ), rd=v(vT))
        e.vissue('vz')

    small_loads()
    for g in range(KD):
        load_scales(g % 2)
        for i in range(min(RPG, DEP)):
            load_row(g * RPG + i, S_K)

    e.salu(f"s_mov_b32 s{S_V}, s8")
    e.salu(f"s_and_b32 s{S_V+1}, s9, 0xffff")
    e.salu(f"s_mov_b32 s{S_V+2}, 0x10000000")
    e.salu(f"s_mov_b32 s{S_V+3}, 0x00020000")
    e.salu(f"s_mov_b32 s{sWS}, s22")
    e.salu(f"s_and_b32 s{sWS+1}, s23, 0xffff")
    e.salu(f"s_mov_b32 s{sWS+2}, 0x40000000")
    e.salu(f"s_mov_b32 s{sWS+3}, 0x00020000")
    e.salu(f"s_mov_b32 s{sCEXP}, {cexp_hex}")

    e.salu(f"s_lshl_b32 s{sTMP}, s{sWAVE}, 11")
    e.valu("v_lshrrev_b32", v(vT), 5, v(vLANE))
    e.valu("v_lshlrev_b32", v(vLA), 9, v(vT))
    e.valu("v_bfe_u32", v(vT), v(vLANE), 4, 1)
    e.valu("v_lshl_add_u32", v(vLA), v(vT), 2, v(vLA))
    e.valu("v_bfe_u32", v(vT), v(vLANE), 3, 1)
    e.valu("v_lshl_add_u32", v(vLA), v(vT), 3, v(vLA))
    e.valu("v_bfe_u32", v(vT), v(vLANE), 2, 1)
    e.valu("v_lshl_add_u32", v(vLA), v(vT), 4, v(vLA))
    e.valu("v_add_u32", v(vLA), f"s{sTMP}", v(vLA))
    e.valu("v_and_b32", v(vT), 15, v(vLANE))
    e.valu("v_lshrrev_b32", v(vT + 1), 1, v(vT))
    e.valu("v_lshrrev_b32", v(vT + 2), 4, v(vLANE))
    e.ins(f"v_cmp_eq_u32 vcc, v{vT+1}, v{vT+2}", 'valu', wr='vcc', rd=[v(vT + 1), v(vT + 2)])
    e.valu("v_and_b32", v(vT + 3), 1, v(vLANE))
    e.valu("v_lshlrev_b32", v(vT + 3), 8, v(vT + 3))
    e.valu("v_add_u32", v(vT + 3), P_OFF, v(vT + 3))
    e.valu("v_mov_b32", v(vT + 4), Z_OFF)
    e.ins(f"v_cndmask_b32 v{vAA}, v{vT+4}, v{vT+3}, vcc", 'valu', wr=v(vAA), rd=[v(vT + 4), v(vT + 3), 'vcc'])
    e.valu("v_add_u32", v(vAA), f"s{sTMP}", v(vAA))
    e.valu("v_lshlrev_b32", v(vT), 2, v(vLANE))
    e.valu("v_add_u32", v(vT), f"s{sTMP}", v(vT))
    e.valu("v_mov_b32", v(vT + 1), 0)
    e.ins(f"ds_write_b32 v{vT}, v{vT+1} offset:{Z_OFF}", 'ds', rd=[v(vT), v(vT + 1)])
    for i in range(16):
        e.valu("v_mov_b32", v(vACC + i), 0)

    def perm(op, a, b):
        e.ins(f"{op} v{a}, v{b}", 'perm', wr=[v(a), v(b)], rd=[v(a), v(b)])

    def dpp(op, d, s0, s1, ctl):
        e.ins(f"{op}_dpp v{d}, v{s0}, v{s1} {ctl}", 'dpp', wr=v(d), rd=[v(s0)])

    def pkop(op, d, a, b, mods=""):
        e.ins(f"{op} {vr(d,2)}, {vr(a,2)}, {b} {mods}".rstrip(), 'valu', wr=vr(d, 2), rd=[vr(a, 2), b])

    def k_row(i, j, srd_next):
        r = R(i)
        t = vT + 4 * (j % 2)
        kk = vT + 8 + 2 * (j % 2)
        a0, a1 = vB + 2 * j, vB + 2 * j + 1
        e.vwait(('R', i % D))
        def at(p):
            if p == POS:
                load_row(i + DEP, srd_next)
        at(0)
        for c in range(4):
            e.valu("v_cvt_f32_i32", v(t + c), v(r + c))
        at(1)
        if exact_int:
            for c in range(4):
                e.valu("v_cvt_pk_bf16_f32", v(t + c), 0, v(t + c))
        for c in range(4):
            e.valu("v_sub_f32", v(t + c), v(t + c), v(vKZ + c))
        at(2)
        for c in range(4):
            e.valu("v_cvt_pk_bf16_f32", v(t + c), 0, v(t + c))
        for c in range(4):
            e.valu("v_mul_f32", v(t + c), v(t + c), v(vKS + c))
        at(3)
        e.valu("v_cvt_pk_bf16_f32", v(kk), v(t), v(t + 1))
        e.valu("v_cvt_pk_bf16_f32", v(kk + 1), v(t + 2), v(t + 3))
        for (acc, k_, q_, first) in ((a0, kk, vQ, True), (a1, kk, vQ + 2, True), (a0, kk + 1, vQ + 1, False), (a1, kk + 1, vQ + 3, False)):
            c_ = "0" if first else v(acc)
            e.ins(f"v_dot2_f32_bf16 v{acc}, v{k_}, v{q_}, {c_}", 'dot', wr=v(acc),
                  rd=[v(k_), v(q_)] + ([] if first else [v(acc)]), ab=[v(k_), v(q_)])
        at(4)

    def k_reduce(lds_off):
        for j in range(8):
            perm("v_permlane32_swap_b32", vB + 2 * j, vB + 2 * j + 1)
        for j in range(8):
            e.valu("v_add_f32", v(vB + 2 * j), v(vB + 2 * j), v(vB + 2 * j + 1))
        for j in range(4):
            perm("v_permlane16_swap_b32", vB + 4 * j, vB + 4 * j + 2)
        for j in range(4):
            e.valu("v_add_f32", v(vB + 4 * j), v(vB + 4 * j), v(vB + 4 * j + 2))
        for j in range(2):
            X, Y = vB + 8 * j, vB + 8 * j + 4
            dpp("v_add_f32", X, X, X, "row_ror:8 row_mask:0xf bank_mask:0x3")
            dpp("v_add_f32", X, Y, Y, "row_ror:8 row_mask:0xf bank_mask:0xc")
        X, Y = vB, vB + 8
        dpp("v_add_f32", X, X, X, "row_shl:4 row_mask:0xf bank_mask:0x5")
        dpp("v_add_f32", X, Y, Y, "row_shr:4 row_mask:0xf bank_mask:0xa")
        dpp("v_add_f32", X, X, X, "quad_perm:[1,0,3,2] row_mask:0xf bank_mask:0xf")
        dpp("v_add_f32", X, X, X, "quad_perm:[2,3,0,1] row_mask:0xf bank_mask:0xf")
        e.ins(f"ds_write_b32 v{vLA}, v{X} offset:{lds_off}", 'ds', rd=[v(vLA), v(X)])

    def k_iter(tail):
        for g in range(KD):
            b = g % 2
            e.vwait(('S', b))
            unpack_scales(b)
            if not tail:
                load_scales(b)
            elif g == 0:
                vscale_loads()
            for ii in range(RPG):
                i = g * RPG + ii
                if tail and i + DEP == BODY:
                    e.salu(f"s_lshl_b32 s{sPRE}, s{sROW}, 10", wr=f"s{sPRE}")
                k_row(i, i % 8, S_V if (tail and i + DEP >= BODY) else S_K)
                if i % 8 == 7:
                    k_reduce((i // 8) * 32)

    e.salu(f"s_mov_b32 s{sLOOP}, {NITER-1}")
    e.fence(4)
    e.label("L_kloop")
    q0 = [t for t in e.vq if t not in ('q0', 'q')]
    k_iter(False)
    assert e.vq == q0[len(q0) - len(e.vq):], (e.vq, q0)
    e.vq = list(q0)
    e.valu("v_add_u32", v(vLA), BODY * 4, v(vLA))
    e.salu(f"s_sub_u32 s{sLOOP}, s{sLOOP}, 1")
    e.salu(f"s_cmp_lg_u32 s{sLOOP}, 0")
    e.fence(4)
    e.ins("s_cbranch_scc1 L_kloop", 'other')
    k_iter(True)

    e.salu(f"s_lshl_b32 s{sTMP}, s{sWAVE}, 11")
    e.valu("v_lshlrev_b32", v(vX), 4, v(vLANE))
    e.valu("v_add_u32", v(vX), f"s{sTMP}", v(vX))
    e.wait(lgkm=0)
    e.ins(f"ds_read_b128 {vr(vT,4)}, v{vX}", 'ds', wr=vr(vT, 4), rd=v(vX))
    e.wait(lgkm=0)
    for i in range(NT):
        e.valu("v_cvt_pk_bf16_f32", v(vT + i), 0, v(vT + i))
    e.valu("v_max_f32", v(vM), v(vT), v(vT + 1))
    e.valu("v_max3_f32", v(vM), v(vM), v(vT + 2), v(vT + 3))

    def allreduce32(op, reg, tmp):
        dpp(op, reg, reg, reg, "quad_perm:[1,0,3,2] row_mask:0xf bank_mask:0xf")
        dpp(op, reg, reg, reg, "quad_perm:[2,3,0,1] row_mask:0xf bank_mask:0xf")
        dpp(op, reg, reg, reg, "row_ror:4 row_mask:0xf bank_mask:0xf")
        dpp(op, reg, reg, reg, "row_ror:8 row_mask:0xf bank_mask:0xf")
        e.valu("v_mov_b32", v(tmp), v(reg))
        perm("v_permlane16_swap_b32", reg, tmp)
        e.valu(op, v(reg), v(reg), v(tmp))

    allreduce32("v_max_f32", vM, vX + 1)
    for i in range(NT):
        e.valu("v_sub_f32", v(vT + i), v(vT + i), v(vM))
    for i in range(NT):
        e.valu("v_mul_f32", v(vT + i), f"s{sCEXP}", v(vT + i))
    for i in range(NT):
        e.valu("v_exp_f32", v(vT + i), v(vT + i), kind='trans')
    e.valu("v_lshlrev_b32", v(vX), 3, v(vLANE))
    e.valu("v_add_u32", v(vX), f"s{sTMP}", v(vX))
    e.valu("v_cvt_pk_bf16_f32", v(vT + 4), v(vT), v(vT + 1))
    e.valu("v_cvt_pk_bf16_f32", v(vT + 5), v(vT + 2), v(vT + 3))
    e.ins(f"ds_write_b64 v{vX}, {vr(vT+4,2)} offset:{P_OFF}", 'ds', rd=[v(vX), vr(vT + 4, 2)])
    e.valu("v_add_f32", v(vL), v(vT), v(vT + 1))
    e.valu("v_add_f32", v(vT + 2), v(vT + 2), v(vT + 3))
    e.valu("v_add_f32", v(vL), v(vL), v(vT + 2))
    allreduce32("v_add_f32", vL, vX + 1)
    if 'vz' in e.vq:
        e.vwait('vz')
    e.wait(lgkm=0)

    e.salu(f"s_mov_b32 s{sLANE}, 0", wr=f"s{sLANE}")

    def v_iter(last):
        for i in range(BODY):
            j = i % 8
            r = R(i)
            t = vT + 4 * (j % 2)
            if j == 0:
                e.ins(f"ds_read_b128 {vr(vA,4)}, v{vAA} offset:{(i//8)*16}", 'ds', wr=vr(vA, 4), rd=v(vAA))
            if j % 2 == 0:
                e.ins(f"v_readlane_b32 s{sRA}, v{vZ}, s{sLANE}", 'readlane', wr=f"s{sRA}", rd=[v(vZ), f"s{sLANE}"], lanesel=f"s{sLANE}")
                e.ins(f"v_readlane_b32 s{sRB}, v{vS}, s{sLANE}", 'readlane', wr=f"s{sRB}", rd=[v(vS), f"s{sLANE}"], lanesel=f"s{sLANE}")
                e.salu(f"s_add_u32 s{sLANE}, s{sLANE}, 1", wr=f"s{sLANE}")
                e.nop(1)
                e.salu(f"s_lshl_b32 s{sZ}, s{sRA}, 16", wr=f"s{sZ}")
                e.salu(f"s_and_b32 s{sZ+1}, s{sRA}, 0xffff0000", wr=f"s{sZ+1}")
                e.salu(f"s_lshl_b32 s{sS}, s{sRB}, 16", wr=f"s{sS}")
                e.salu(f"s_and_b32 s{sS+1}, s{sRB}, 0xffff0000", wr=f"s{sS+1}")
            hi = j % 2
            e.vwait(('R', i % D))
            do_load = not (last and i + DEP >= BODY)
            def at(p):
                if p == POS and do_load:
                    load_row(i + DEP, S_V)
            at(0)
            for c in range(4):
                e.valu("v_cvt_f32_i32", v(t + c), v(r + c))
            at(1)
            if exact_int:
                for c in range(4):
                    e.valu("v_cvt_pk_bf16_f32", v(t + c), 0, v(t + c))
            for c in range(4):
                e.valu("v_subrev_f32", v(t + c), f"s{sZ+hi}", v(t + c))
            at(2)
            for c in range(4):
                e.valu("v_cvt_pk_bf16_f32", v(t + c), 0, v(t + c))
            for c in range(4):
                e.valu("v_mul_f32", v(t + c), f"s{sS+hi}", v(t + c))
            at(3)
            if j % 2 == 1:
                for c in range(4):
                    e.valu("v_cvt_pk_bf16_f32", v(vB + 4 * c + j // 2), v(vT + c), v(vT + 4 + c))
            at(4)
            if j == 7:
                e.wait(lgkm=0)
                for c in range(4):
                    acc = vr(vACC + 4 * c, 4)
                    e.ins(f"v_mfma_f32_16x16x32_bf16 {acc}, {vr(vA,4)}, {vr(vB+4*c,4)}, {acc}", 'mfma',
                          wr=acc, rd=[vr(vA, 4), vr(vB + 4 * c, 4), acc], ab=[vr(vA, 4), vr(vB + 4 * c, 4)], c=acc)

    e.salu(f"s_mov_b32 s{sLOOP}, {NITER-1}")
    e.fence(4)
    e.label("L_vloop")
    q0 = list(e.vq)
    v_iter(False)
    assert e.vq == q0, (e.vq, q0)
    e.valu("v_add_u32", v(vAA), BODY * 2, v(vAA))
    e.salu(f"s_sub_u32 s{sLOOP}, s{sLOOP}, 1")
    e.salu(f"s_cmp_lg_u32 s{sLOOP}, 0")
    e.fence(4)
    e.ins("s_cbranch_scc1 L_vloop", 'other')
    v_iter(True)

    e.valu("v_lshrrev_b32", v(vT), 4, v(vLANE))
    e.valu("v_lshlrev_b32", v(vT), 9, v(vT))
    e.valu("v_and_b32", v(vT + 1), 15, v(vLANE))
    e.valu("v_lshl_add_u32", v(vT), v(vT + 1), 4, v(vT))
    e.valu("v_add_u32", v(vT), f"s{sTMP}", v(vT))
    e.valu("v_lshrrev_b32", v(vT + 1), 5, v(vLANE))
    e.valu("v_lshlrev_b32", v(vT + 1), 3, v(vT + 1))
    e.salu(f"s_lshl_b32 s{sTMP2}, s{sWAVE}, 4")
    e.valu("v_add_u32", v(vT + 1), f"s{sTMP2}", v(vT + 1))
    e.ins(f"ds_write_b64 v{vT+1}, {vr(vM,2)} offset:{ML_OFF}", 'ds', rd=[v(vT + 1), vr(vM, 2)])
    for u in range(2):
        for h in range(2):
            q = vB + 4 * (2 * u + h)
            for c in range(4):
                e.valu("v_mov_b32", v(q + c), v(vACC + 4 * c + 2 * u + h))
    e.salu("s_mov_b32 exec_hi, 0")
    for u in range(2):
        for h in range(2):
            q = vB + 4 * (2 * u + h)
            e.ins(f"ds_write_b128 v{vT}, {vr(q,4)} offset:{h*1024+u*256}", 'ds', rd=[v(vT), vr(q, 4)])
    e.salu("s_mov_b64 exec, -1")
    e.wait(lgkm=0)
    e.ins("s_barrier", 'other')
    if stamp:
        e.salu("s_memrealtime s[74:75]")
    e.salu(f"s_cmp_lg_u32 s{sWAVE}, 0")
    e.ins("s_cbranch_scc1 L_part_end", 'other')
    e.valu("v_lshlrev_b32", v(vX), 5, v(vLANE))
    e.valu("v_lshrrev_b32", v(vT), 5, v(vLANE))
    e.valu("v_lshlrev_b32", v(vX + 1), 3, v(vT))
    mlb = vT
    ob = vRING
    for w in range(NW):
        e.ins(f"ds_read_b64 {vr(mlb+2*w,2)}, v{vX+1} offset:{ML_OFF+16*w}", 'ds', wr=vr(mlb + 2 * w, 2), rd=v(vX + 1))
    for w in range(NW):
        e.ins(f"ds_read_b128 {vr(ob+8*w,4)}, v{vX} offset:{WREG*w}", 'ds', wr=vr(ob + 8 * w, 4), rd=v(vX))
        e.ins(f"ds_read_b128 {vr(ob+8*w+4,4)}, v{vX} offset:{WREG*w+16}", 'ds', wr=vr(ob + 8 * w + 4, 4), rd=v(vX))
    e.wait(lgkm=0)

    def combine(n, mlb, ob, acc):
        e.valu("v_mov_b32", v(vM), v(mlb))
        for w in range(1, n):
            e.valu("v_max_f32", v(vM), v(vM), v(mlb + 2 * w))
        for w in range(n):
            e.valu("v_sub_f32", v(mlb + 2 * w), v(mlb + 2 * w), v(vM))
        for w in range(n):
            e.valu("v_mul_f32", v(mlb + 2 * w), f"s{sCEXP}", v(mlb + 2 * w))
        for w in range(n):
            e.valu("v_exp_f32", v(mlb + 2 * w), v(mlb + 2 * w), kind='trans')
        e.valu("v_mul_f32", v(vL), v(mlb), v(mlb + 1))
        for c in range(8):
            e.valu("v_mul_f32", v(acc + c), v(mlb), v(ob + c))
        for w in range(1, n):
            e.valu("v_fmac_f32", v(vL), v(mlb + 2 * w), v(mlb + 2 * w + 1))
            for c in range(8):
                e.valu("v_fmac_f32", v(acc + c), v(mlb + 2 * w), v(ob + 8 * w + c))

    combine(NW, mlb, ob, vACC)
    e.salu(f"s_lshl_b32 s{sTMP2}, s2, 11")
    e.ins(f"buffer_store_dwordx4 {vr(vACC,4)}, v{vX}, {sr(sWS,4)}, s{sTMP2} offen sc1", 'vstore', rd=[vr(vACC, 4), v(vX)], data=vr(vACC, 4))
    e.ins(f"buffer_store_dwordx4 {vr(vACC+4,4)}, v{vX}, {sr(sWS,4)}, s{sTMP2} offen offset:16 sc1", 'vstore', rd=[vr(vACC + 4, 4), v(vX)], data=vr(vACC + 4, 4))
    e.salu(f"s_lshl_b32 s{sTMP2}, s2, 4")
    e.salu(f"s_add_u32 s{sTMP2}, s{sTMP2}, 0x400000")
    e.salu("s_mov_b32 exec_lo, 1")
    e.salu("s_mov_b32 exec_hi, 1")
    e.ins(f"buffer_store_dwordx2 {vr(vM,2)}, v{vX+1}, {sr(sWS,4)}, s{sTMP2} offen sc1", 'vstore', rd=[vr(vM, 2), v(vX + 1)])
    e.salu(f"s_mov_b32 s{S_T}, s20")
    e.salu(f"s_and_b32 s{S_T+1}, s21, 0xffff")
    e.salu(f"s_mov_b32 s{S_T+2}, 256")
    e.salu(f"s_mov_b32 s{S_T+3}, 0x00020000")
    e.salu(f"s_lshl_b32 s{sTMP2}, s{sBH}, 2")
    e.valu("v_mov_b32", v(vT), 1)
    e.valu("v_mov_b32", v(vT + 1), 0)
    e.salu("s_mov_b32 exec_hi, 0")
    e.wait(vm=0)
    e.ins(f"buffer_atomic_add v{vT}, v{vT+1}, {sr(S_T,4)}, s{sTMP2} offen sc0 sc1", 'vmem', wr=v(vT), rd=[v(vT), v(vT + 1)])
    e.wait(vm=0)
    e.ins(f"v_readfirstlane_b32 s{sTMP}, v{vT}", 'readlane', wr=f"s{sTMP}", rd=v(vT))
    e.salu("s_mov_b64 exec, -1")
    e.nop(2)
    e.salu(f"s_cmp_lg_u32 s{sTMP}, {NSPLIT-1}")
    e.ins("s_cbranch_scc1 " + ("L_stamp" if stamp else "L_part_end"), 'other')
    e.salu(f"s_mul_i32 s{sTMP}, s{sBH}, {NSPLIT*2048}")
    e.salu(f"s_mul_i32 s{sTMP2}, s{sBH}, {NSPLIT*16}")
    e.salu(f"s_add_u32 s{sTMP2}, s{sTMP2}, 0x400000")
    for sp in range(NSPLIT):
        e.ins(f"buffer_load_dwordx2 {vr(mlb+2*sp,2)}, v{vX+1}, {sr(sWS,4)}, s{sTMP2} offen offset:{16*sp} sc1", 'vmem', wr=vr(mlb + 2 * sp, 2), rd=v(vX + 1))
    for sp in range(NSPLIT):
        e.ins(f"buffer_load_dwordx4 {vr(ob+8*sp,4)}, v{vX}, {sr(sWS,4)}, s{sTMP} offen offset:{(sp%2)*2048} sc1", 'vmem', wr=vr(ob + 8 * sp, 4), rd=v(vX))
        e.ins(f"buffer_load_dwordx4 {vr(ob+8*sp+4,4)}, v{vX}, {sr(sWS,4)}, s{sTMP} offen offset:{(sp%2)*2048+16} sc1", 'vmem', wr=vr(ob + 8 * sp + 4, 4), rd=v(vX))
        if sp % 2 == 1:
            e.salu(f"s_add_u32 s{sTMP}, s{sTMP}, 4096")
    e.salu(f"s_mov_b32 s{S_T}, s18")
    e.salu(f"s_and_b32 s{S_T+1}, s19, 0xffff")
    e.salu(f"s_mov_b32 s{S_T+2}, {8*16*256*2}")
    e.salu(f"s_mov_b32 s{S_T+3}, 0x00020000")
    e.salu(f"s_lshl_b32 s{sTMP2}, s{sBH}, 10")
    e.valu("v_lshlrev_b32", v(vX + 1), 4, v(vLANE))
    e.wait(vm=0)
    combine(NSPLIT, mlb, ob, vACC)
    e.valu("v_rcp_f32", v(vL), v(vL), kind='trans')
    for c in range(8):
        e.valu("v_mul_f32", v(vACC + c), v(vACC + c), v(vL))
    for c in range(4):
        e.valu("v_cvt_pk_bf16_f32", v(vB + c), v(vACC + 2 * c), v(vACC + 2 * c + 1))
    e.ins(f"buffer_store_dwordx4 {vr(vB,4)}, v{vX+1}, {sr(S_T,4)}, s{sTMP2} offen", 'vstore', rd=[vr(vB, 4), v(vX + 1)], data=vr(vB, 4))
    if stamp:
        e.raw("""L_stamp:
    s_waitcnt vmcnt(0)
    s_memrealtime s[70:71]
    s_mov_b32 exec_lo, 1
    s_mov_b32 exec_hi, 0
    s_getreg_b32 s72, hwreg(HW_REG_XCC_ID)
    s_waitcnt lgkmcnt(0)
    s_sub_u32 s73, s70, s74
    v_mov_b32 v8, s70
    v_mov_b32 v9, s68
    v_mov_b32 v10, s72
    v_mov_b32 v11, s73
    v_mov_b32 v12, 0
    s_lshl_b32 s40, s2, 4
    s_add_u32 s40, s40, 0x800000
    s_nop 4
    buffer_store_dwordx4 v[8:11], v12, s[52:55], s40 offen
    s_waitcnt vmcnt(0)""")
    e.label("L_part_end")
    e.ins("s_endpgm", 'other')

    nv_alloc = ((NV + 7) // 8) * 8
    hdr = open("cdna_kernels/" + NAME + ".s.ref").read().split("; @launch")[0]
    out = hdr
    out += f"; @launch grid=({NWG},1,1) block=({NW*64},1,1) lds={LDS}\n"
    out += f"; params: D={D} DEP={DEP} POS={POS} flags={flags} exact_int={exact_int} pk={pk}\n"
    out += '.amdgcn_target "amdgcn-amd-amdhsa--gfx950"\n.text\n'
    out += "\n".join(e.lines) + "\n"
    out += f""".section .rodata,"a"
.p2align 6
.amdhsa_kernel {kname}
  .amdhsa_next_free_vgpr {nv_alloc}
  .amdhsa_next_free_sgpr {80 if stamp else 72}
  .amdhsa_accum_offset {nv_alloc}
  .amdhsa_group_segment_fixed_size 0
  .amdhsa_kernarg_size 80
  .amdhsa_user_sgpr_count 2
  .amdhsa_user_sgpr_kernarg_segment_ptr 1
  .amdhsa_system_sgpr_workgroup_id_x 1
  .amdhsa_float_denorm_mode_32 3
.end_amdhsa_kernel
"""
    return out


if __name__ == "__main__":
    ap = argparse.ArgumentParser()
    ap.add_argument("--d", type=int, default=4)
    ap.add_argument("--dep", type=int, default=3)
    ap.add_argument("--pos", type=int, default=0)
    ap.add_argument("--flags", default="nt")
    ap.add_argument("--noexact", action="store_true")
    ap.add_argument("--nopk", action="store_true")
    ap.add_argument("--stamp", action="store_true")
    ap.add_argument("-o", default="cdna_kernels/" + NAME + ".s")
    a = ap.parse_args()
    s = gen(a.d, a.flags, not a.noexact, not a.nopk, a.stamp, a.dep, 0, a.pos)
    open(a.o, "w").write(s)
```
